```python
import torch

def _softmax(x, axis=-1):
    return torch.softmax(x, dim=axis)
def _gelu(x):
    return torch.nn.functional.gelu(x, approximate="tanh")
def _silu(x):
    return torch.nn.functional.silu(x)
def _sigmoid(x):
    return torch.sigmoid(x)
def _layernorm(x, axis=-1, eps=1e-5):
    m = x.mean(dim=axis, keepdim=True)
    v = x.var(dim=axis, keepdim=True, unbiased=False)
    return (x - m) / torch.sqrt(v + eps)
def _scatter_add(tgt, idx, src, axis=0):
    return tgt.clone().index_add_(axis, idx, src)
def _segment_sum(src, seg, n):
    out = torch.zeros((n,) + src.shape[1:], dtype=src.dtype)
    return out.index_add_(0, seg, src)
def _pad(x, pw):
    flat = tuple(v for pair in reversed(pw) for v in pair)
    return torch.nn.functional.pad(x, flat)

kernel_name = 'gated_mix__ssm_conv_h3__dense_activation_silu__prompt'

def setup_inputs():

    _w = (lambda a: (lambda t: t.to(torch.bfloat16) if t.is_floating_point() else t)(torch.as_tensor(a)))
    def _A_setup():
        B, S, D = 1, 2048, 512
        ks = 4
        return {
            "q": _w((lambda *s: torch.randn(*s, dtype=torch.bfloat16) * 0.05)(B, S, D)),
            "k": _w((lambda *s: torch.randn(*s, dtype=torch.bfloat16) * 0.2)(B, S, D)),
            "v": _w((lambda *s: torch.randn(*s, dtype=torch.bfloat16) * 0.2)(B, S, D)),
            "shift_k": _w((lambda *s: torch.randn(*s, dtype=torch.bfloat16) * 0.2)(D, ks) * 0.5),
            "ssm_k": _w((lambda *s: torch.randn(*s, dtype=torch.bfloat16) * 0.4)(D, S) * (1.0 / S ** 0.5)),
            "ssm_D": _w((lambda *s: torch.randn(*s, dtype=torch.bfloat16) * 0.2)(D)),
        }
    _A_in = _A_setup()

    def _B_setup():
        B, S, D, F = 1, 2048, 512, 1792
        return {
            "x": _w((lambda *s: torch.randn(*s, dtype=torch.bfloat16) * 0.05)(B, S, D)),
            "w1": _w((lambda *s: torch.randn(*s, dtype=torch.bfloat16) * 3.2)(D, F) * (D ** -0.5)),
            "w2": _w((lambda *s: torch.randn(*s, dtype=torch.bfloat16) * 0.05)(F, D) * (F ** -0.5)),
        }
    _B_in = _B_setup()

    return {
        "A_q": _A_in["q"],
        "A_k": _A_in["k"],
        "A_v": _A_in["v"],
        "A_shift_k": _A_in["shift_k"],
        "A_ssm_k": _A_in["ssm_k"],
        "A_ssm_D": _A_in["ssm_D"],
        "B_x": _B_in["x"],
        "B_w1": _B_in["w1"],
        "B_w2": _B_in["w2"],
        "gate_w": _w((lambda *s: torch.randn(*s, dtype=torch.bfloat16) * 0.05)(512) * 16.0),
    }

def reference(A_q, A_k, A_v, A_shift_k, A_ssm_k, A_ssm_D, B_x, B_w1, B_w2, gate_w):
    def _A_ref(q, k, v, shift_k, ssm_k, ssm_D):
        B, S, D = q.shape
        ks = shift_k.shape[-1]
        k_pad = _pad(k, ((0, 0), (ks - 1, 0), (0, 0)))
        k_shift = torch.zeros_like(k)
        for t in range(ks):
            k_shift = k_shift + k_pad[:, t:t + S, :] * shift_k[:, ks - 1 - t][None, None, :]
        kv = k_shift * v
        L = 2 * S
        kv_pad = _pad(kv, ((0, 0), (0, S), (0, 0)))
        kf_pad = _pad(ssm_k, ((0, 0), (0, S)))
        kv_f = (lambda x, axes=(-2,-1): torch.fft.rfft2(x.float(), dim=axes))(kv_pad[:, None, :, :], axes=(1, 2))
        kf_f = (lambda x, axes=(-2,-1): torch.fft.rfft2(x.float(), dim=axes))(kf_pad[:, None, :], axes=(1, 2))
        kf_f = (lambda x, *d: x.permute(*d))(kf_f, 1, 2, 0)
        y_f = kv_f * kf_f[None, :, :, :]
        y = (lambda x, s, axes=(-2,-1): torch.fft.irfft2(x, s=s, dim=axes).to(torch.bfloat16))(y_f, (1, L), axes=(1, 2))[:, 0, :S, :]
        y = y + kv * ssm_D[None, None, :]
        return q * y

    def _B_ref(x, w1, w2):
        h = torch.einsum("bsd,df->bsf", x, w1)
        h = _silu(h)
        out = torch.einsum("bsf,fd->bsd", h, w2)
        return out

    x = A_q
    g = _sigmoid((x * gate_w).sum(-1, keepdims=True))
    a = _A_ref(x, A_k, A_v, A_shift_k, A_ssm_k, A_ssm_D)
    b = _B_ref(x, B_w1, B_w2)
    return g * a + (1 - g) * b
```

```python
import sys

KNAME = "gated_mix__ssm_conv_h3__dense_activation_silu__prompt_kernel"
HEADER = open("gated_mix__ssm_conv_h3__dense_activation_silu__prompt.s.ref").read().split("; Override launch")[0]

WS_KVR = 0
WS_HF  = 2 << 20
WS_Y2  = 10 << 20
WS_G   = 12 << 20
WS_SIZE = 13 << 20

SLOT = 30720
NSLOT = 5
W2RING = 28672
L_TOEP = 114688
TP = 4160
L_UR = L_TOEP + 2 * 4 * TP
URP = 5120
LDS_TOTAL = 163840
L_CRED = L_TOEP
L_QT = L_TOEP
L_YT = L_TOEP + 8192
L_RED = 0

class G:
    def __init__(self):
        self.L = []
        self.nlab = 0
    def e(self, s):
        for line in s.strip("\n").split("\n"):
            self.L.append("    " + line.strip())
    def c(self, s):
        self.L.append("    ; " + s)
    def lab(self, l):
        self.L.append(l + ":")
    def newlab(self, p="L"):
        self.nlab += 1
        return f"{p}_{self.nlab}"

g = G()
e = g.e

S_Q, S_K, S_V, S_SSMK, S_W1, S_W2, S_OUT, S_DBG, S_WS, S_SK, S_GW = [44 + 4 * i for i in range(11)]
def srd(b): return f"s[{b}:{b+3}]"

def prologue():
    e("s_cmp_ge_u32 s2, 256")
    e("s_cbranch_scc1 L_end")
    for (b, off) in ((S_Q, 0), (S_K, 8), (S_V, 16), (S_SK, 24), (S_SSMK, 32), (S_W1, 56), (S_W2, 64), (S_GW, 72), (S_OUT, 80), (S_DBG, 88), (S_WS, 96)):
        e(f"s_load_dwordx2 s[{b}:{b+1}], s[0:1], {off}")
    e("s_load_dwordx2 s[40:41], s[0:1], 40")
    for (b, n) in ((S_Q, 2 << 20), (S_K, 2 << 20), (S_V, 2 << 20), (S_SK, 4096), (S_SSMK, 2 << 20), (S_W1, 1835008), (S_W2, 1835008), (S_GW, 1024), (S_OUT, 2 << 20), (S_DBG, 256), (S_WS, WS_SIZE)):
        e(f"s_mov_b32 s{b+2}, {n}")
        e(f"s_mov_b32 s{b+3}, 0x00020000")
    e("""
    v_and_b32 v1, 63, v0          ; lane
    v_lshrrev_b32 v2, 6, v0       ; wave
    s_and_b32 s4, s2, 7           ; xcd
    s_lshr_b32 s5, s2, 3          ; idx
    v_readfirstlane_b32 s3, v2
    s_lshr_b32 s6, s4, 1
    s_lshl_b32 s6, s6, 2
    s_and_b32 s7, s5, 3
    s_add_u32 s6, s6, s7
    s_and_b32 s7, s4, 1
    s_lshl_b32 s7, s7, 3
    s_lshr_b32 s8, s5, 2
    s_add_u32 s7, s7, s8
    s_lshl_b32 s8, s4, 2
    s_and_b32 s9, s5, 3
    s_add_u32 s8, s8, s9
    s_lshr_b32 s9, s5, 2
    s_lshl_b32 s10, s4, 5
    s_add_u32 s10, s10, s5
    v_and_b32 v3, 15, v1          ; l&15
    v_lshrrev_b32 v4, 4, v1       ; q = l>>4
    s_waitcnt lgkmcnt(0)
    """)

def signal(val):
    lab = g.newlab("L_sig")
    e("s_waitcnt vmcnt(0) lgkmcnt(0)")
    e("s_barrier")
    e("s_cmp_lg_u32 s3, 0")
    e(f"s_cbranch_scc1 {lab}")
    e(f"v_mov_b32 v250, {val}")
    e("v_mov_b32 v251, s2")
    e("s_mov_b64 exec, 1")
    e(f"buffer_store_byte v250, v251, {srd(S_DBG)}, 0 offen sc0 sc1")
    e("s_mov_b64 exec, -1")
    g.lab(lab)

def wait_flags(vmask):
    lab = g.newlab("L_wait")
    done = g.newlab("L_wdone")
    e("v_lshlrev_b32 v250, 2, v1")
    e("s_mov_b32 s90, 0")
    g.lab(lab)
    e(f"buffer_load_dword v251, v250, {srd(S_DBG)}, 0 offen sc0 sc1")
    e("s_waitcnt vmcnt(0)")
    e(f"v_and_b32 v251, v251, {vmask}")
    e(f"v_cmp_ne_u32 vcc, v251, {vmask}")
    e("s_add_u32 s90, s90, 1")
    e("s_cmp_lt_u32 s90, 0x40000")
    e(f"s_cbranch_scc0 {done}")
    e(f"s_cbranch_vccz {done}")
    e("s_sleep 1")
    e(f"s_branch {lab}")
    g.lab(done)

def mask_mod8(vdst, sval, bit):
    e(f"""
    v_and_b32 v252, 1, v1
    s_lshr_b32 s90, {sval}, 2
    s_and_b32 s91, {sval}, 3
    s_lshl_b32 s91, s91, 3
    s_lshl_b32 s91, {bit}, s91
    v_mov_b32 v253, s91
    v_cmp_eq_u32 vcc, s90, v252
    s_nop 1
    v_cndmask_b32 {vdst}, 0, v253, vcc
    """)

def mask_rb(vdst, srb, bit):
    e(f"""
    s_lshr_b32 s90, {srb}, 2        ; rowgroup 0..3
    s_and_b32 s91, {srb}, 3
    s_lshr_b32 s92, s90, 1          ; needed j&1
    s_and_b32 s93, s90, 1           ; needed b>>1
    s_lshl_b32 s93, s93, 4
    s_mov_b32 s94, {bit | (bit << 8)}
    s_lshl_b32 s94, s94, s93
    v_and_b32 v252, 1, v1
    v_lshrrev_b32 v253, 1, v1
    v_and_b32 v253, 3, v253
    v_cmp_eq_u32 vcc, s92, v252
    v_cmp_eq_u32 s[96:97], s91, v253
    s_and_b64 vcc, vcc, s[96:97]
    v_mov_b32 v253, s94
    s_nop 1
    v_cndmask_b32 {vdst}, 0, v253, vcc
    """)

def phase0():
    g.c("---- phase 0: kv (reversed, transposed) + gate")
    e(f"""
    v_and_b32 v10, 31, v1             ; p
    v_lshrrev_b32 v11, 5, v1
    v_lshl_add_u32 v11, v2, 1, v11    ; rg = 2w + (l>>5)
    s_lshl_b32 s12, s5, 6
    v_lshl_add_u32 v11, v11, 3, s12
    s_lshl_b32 s13, s4, 7
    v_lshl_add_u32 v12, v10, 2, s13
    v_lshl_add_u32 v13, v11, 10, v12  ; voff0
    v_subrev_u32 v14, 3072, v13       ; voffn
    v_mov_b32 v15, 0x80000000
    v_cmp_eq_u32 vcc, 0, v11
    s_nop 1
    v_cndmask_b32 v14, v14, v15, vcc
    v_lshlrev_b32 v15, 2, v12
    s_mov_b32 s14, 4096
    """)
    for j in range(3):
        e(f"buffer_load_dword v{20+j}, v14, {srd(S_K)}, 0 offen offset:{1024*j}")
    for j in range(8):
        so = "0" if j < 4 else "s14"
        e(f"buffer_load_dword v{23+j}, v13, {srd(S_K)}, {so} offen offset:{1024*(j&3)}")
    for j in range(8):
        so = "0" if j < 4 else "s14"
        e(f"buffer_load_dword v{32+j}, v13, {srd(S_V)}, {so} offen offset:{1024*(j&3)}")
    e(f"buffer_load_dwordx4 v[40:43], v15, {srd(S_SK)}, 0 offen")
    e(f"""
    s_lshl_b32 s15, s6, 7
    s_lshl_b32 s16, s7, 3
    s_add_u32 s15, s15, s16
    s_lshl_b32 s16, s3, 1
    s_add_u32 s15, s15, s16
    s_lshl_b32 s16, s15, 10
    v_lshlrev_b32 v16, 4, v1
    buffer_load_dwordx4 v[44:47], v16, {srd(S_Q)}, s16 offen
    buffer_load_dwordx4 v[48:51], v16, {srd(S_Q)}, s16 offen offset:1024
    buffer_load_dwordx4 v[52:55], v16, {srd(S_GW)}, 0 offen
    s_waitcnt vmcnt(3)
    """)
    for i in range(11):
        e(f"v_lshlrev_b32 v{60+2*i}, 16, v{20+i}")
        e(f"v_and_b32 v{61+2*i}, 0xffff0000, v{20+i}")
    for j in range(8):
        e(f"v_lshlrev_b32 v{84+2*j}, 16, v{32+j}")
        e(f"v_and_b32 v{85+2*j}, 0xffff0000, v{32+j}")
    e("""
    v_lshlrev_b32 v100, 16, v40
    v_lshlrev_b32 v101, 16, v42
    v_and_b32 v102, 0xffff0000, v40
    v_and_b32 v103, 0xffff0000, v42
    v_lshlrev_b32 v104, 16, v41
    v_lshlrev_b32 v105, 16, v43
    v_and_b32 v106, 0xffff0000, v41
    v_and_b32 v107, 0xffff0000, v43
    """)
    def K(i): return f"v[{60+2*i}:{61+2*i}]"
    def S(i): return f"v[{100+2*i}:{101+2*i}]"
    for j in range(8):
        a = f"v[{110+2*j}:{111+2*j}]"
        e(f"v_pk_mul_f32 {a}, {K(j)}, {S(3)}")
        e(f"v_pk_fma_f32 {a}, {K(j+1)}, {S(2)}, {a}")
        e(f"v_pk_fma_f32 {a}, {K(j+2)}, {S(1)}, {a}")
        e(f"v_pk_fma_f32 {a}, {K(j+3)}, {S(0)}, {a}")
        e(f"v_pk_mul_f32 {a}, {a}, v[{84+2*j}:{85+2*j}]")
    for ch in range(2):
        for m in range(4):
            e(f"v_cvt_pk_bf16_f32 v{128+4*ch+m}, v{110+2*(7-2*m)+ch}, v{110+2*(6-2*m)+ch}")
    e(f"""
    v_lshlrev_b32 v17, 11, v12
    v_lshlrev_b32 v18, 1, v11
    v_sub_u32 v17, v17, v18
    v_add_u32 v17, {WS_KVR + 4080}, v17
    buffer_store_dwordx4 v[128:131], v17, {srd(S_WS)}, 0 offen sc0 sc1
    buffer_store_dwordx4 v[132:135], v17, {srd(S_WS)}, s14 offen sc0 sc1
    s_waitcnt vmcnt(2)
    """)
    for i in range(4):
        e(f"v_lshlrev_b32 v{60+2*i}, 16, v{52+i}")
        e(f"v_and_b32 v{61+2*i}, 0xffff0000, v{52+i}")
    for r in range(2):
        b = 70 + 10 * r
        for i in range(4):
            e(f"v_lshlrev_b32 v{b+2*i}, 16, v{44+4*r+i}")
            e(f"v_and_b32 v{b+2*i+1}, 0xffff0000, v{44+4*r+i}")
        for i in range(4):
            e(f"v_pk_mul_f32 v[{b+2*i}:{b+2*i+1}], v[{b+2*i}:{b+2*i+1}], v[{60+2*i}:{61+2*i}]")
        for i in range(4):
            e(f"v_cvt_pk_bf16_f32 v{90+i}, v{b+2*i}, v{b+2*i+1}")
        for i in range(4):
            e(f"v_lshlrev_b32 v{b+2*i}, 16, v{90+i}")
            e(f"v_and_b32 v{b+2*i+1}, 0xffff0000, v{90+i}")
        e(f"v_pk_add_f32 v[{b}:{b+1}], v[{b}:{b+1}], v[{b+2}:{b+3}]")
        e(f"v_pk_add_f32 v[{b+4}:{b+5}], v[{b+4}:{b+5}], v[{b+6}:{b+7}]")
        e(f"v_pk_add_f32 v[{b}:{b+1}], v[{b}:{b+1}], v[{b+4}:{b+5}]")
        e(f"v_add_f32 v{96+r}, v{b}, v{b+1}")
    for off in (0x041F, 0x081F, 0x101F, 0x201F, 0x401F):
        e(f"""
        ds_swizzle_b32 v98, v96 offset:{off}
        ds_swizzle_b32 v99, v97 offset:{off}
        s_waitcnt lgkmcnt(0)
        v_add_f32 v96, v96, v98
        v_add_f32 v97, v97, v99
        """)
    e(f"""
    s_nop 1
    v_readlane_b32 s16, v96, 32
    v_readlane_b32 s17, v97, 32
    v_readlane_b32 s18, v97, 0
    s_nop 1
    v_add_f32 v96, s16, v96
    v_mov_b32 v98, s17
    v_add_f32 v98, s18, v98
    v_cmp_eq_u32 vcc, 1, v1
    s_nop 1
    v_cndmask_b32 v96, v96, v98, vcc
    v_cvt_pk_bf16_f32 v96, v96, v96
    v_lshlrev_b32 v96, 16, v96
    v_mul_f32 v96, 0xbfb8aa3b, v96    ; -log2e * x
    v_exp_f32 v96, v96
    s_nop 0
    v_add_f32 v96, 1.0, v96
    v_rcp_f32 v96, v96
    s_nop 0
    v_cvt_pk_bf16_f32 v96, v96, v96
    v_lshlrev_b32 v96, 16, v96
    s_lshl_b32 s16, s15, 2
    s_add_u32 s16, s16, {WS_G}
    v_lshlrev_b32 v97, 2, v1
    s_mov_b64 exec, 3
    buffer_store_dword v96, v97, {srd(S_WS)}, s16 offen sc0 sc1
    s_mov_b64 exec, -1
    """)

def g1_setup():
    e("""
    v_lshrrev_b32 v10, 3, v1
    v_and_b32 v11, 7, v1
    v_lshrrev_b32 v12, 1, v10
    v_xor_b32 v12, v12, v11
    v_xor_b32 v13, 4, v12
    v_lshlrev_b32 v10, 10, v10
    v_lshl_add_u32 v10, v2, 15, v10
    v_lshl_add_u32 v5, v12, 4, v10
    v_lshl_add_u32 v6, v13, 4, v10
    v_add_u32 v6, 0x2000, v6
    v_mul_u32_u24 v10, 4682, v1
    v_lshrrev_b32 v10, 16, v10        ; l/14
    v_mul_u32_u24 v11, 14, v10
    v_sub_u32 v11, v1, v11            ; l%14
    v_mul_u32_u24 v10, 3584, v10
    v_lshl_add_u32 v7, v11, 4, v10
    v_mul_u32_u24 v10, 14336, v2
    v_add_u32 v7, v7, v10
    s_lshl_b32 s20, s6, 17
    s_mul_i32 s21, s7, 224
    s_lshl_b32 s22, s3, 12
    s_and_b32 s23, s3, 1
    s_lshl_b32 s23, s23, 1
    s_lshr_b32 s24, s3, 1
    s_add_u32 s23, s23, s24           ; perm[w]
    s_mul_i32 s23, s23, 896
    s_add_u32 s23, s23, 16384
    """)
    e("""
    v_lshrrev_b32 v11, 1, v3          ; t>>1
    v_xor_b32 v11, v11, v4            ; q ^ (t>>1)
    v_lshlrev_b32 v11, 4, v11
    v_lshl_add_u32 v11, v3, 7, v11    ; t*128 + ..
    v_lshl_add_u32 v8, v2, 12, v11
    v_xor_b32 v9, 64, v8
    v_lshrrev_b32 v11, 1, v4          ; q>>1
    v_and_b32 v12, 1, v4
    v_lshl_add_u32 v11, v11, 2, v12   ; 4(q>>1)+(q&1)
    v_mul_u32_u24 v11, 896, v11
    v_bfe_u32 v12, v1, 2, 2           ; r
    v_mul_u32_u24 v12, 224, v12
    v_add_u32 v11, v11, v12
    v_and_b32 v12, 3, v1
    v_lshl_add_u32 v240, v12, 3, v11
    v_add_u32 v240, 16384, v240
    """)

def g1_issue(c):
    slot = c % NSLOT
    e(f"s_add_u32 s25, s22, {slot*SLOT}")
    e(f"s_add_u32 s26, s20, {128*c}")
    for j in range(4):
        e("s_mov_b32 m0, s25")
        e("s_add_u32 s25, s25, 1024")
        e(f"buffer_load_dwordx4 v{5+(j&1)}, {srd(S_Q)}, s26 offen lds")
        if j == 1:
            e("s_add_u32 s26, s26, 0x4000")
    e(f"s_add_u32 s25, s23, {slot*SLOT}")
    e(f"s_add_u32 s26, s21, {64*c*3584}")
    e("s_mov_b32 exec_hi, 0x00ffffff")
    for j in range(4):
        e("s_mov_b32 m0, s25")
        e("s_add_u32 s25, s25, 3584")
        e(f"buffer_load_dwordx4 v7, {srd(S_W1)}, s26 offen lds")
        e(f"s_add_u32 s26, s26, {16*3584}")
    e("s_mov_b32 exec_hi, -1")

ACC1 = 140
XF = 200
WF = 208
def gemm1():
    g.c("---- GEMM1")
    for r in range(56):
        e(f"v_mov_b32 v{ACC1+r}, 0")
    for c in range(8):
        slot = c % NSLOT
        issued = min(8, max(NSLOT, c + NSLOT - 1)) if c >= 1 else NSLOT
        n_after = (issued - 1 - c) * 8
        e(f"s_waitcnt vmcnt({n_after})")
        e("s_barrier")
        if c >= 1 and c + NSLOT - 1 < 8:
            g1_issue(c + NSLOT - 1)
        e(f"v_add_u32 v11, {slot*SLOT}, v8")
        e(f"v_add_u32 v12, {slot*SLOT}, v9")
        e(f"v_add_u32 v13, {slot*SLOT}, v240")
        for kk in range(2):
            for tt in range(2):
                e(f"ds_read_b128 v[{XF+4*tt}:{XF+4*tt+3}], v{11+kk} offset:{2048*tt}")
            for i in range(7):
                for hh in range(2):
                    e(f"ds_read_b64_tr_b16 v[{WF+4*i+2*hh}:{WF+4*i+2*hh+1}], v13 offset:{kk*7168+hh*1792+32*i}")
            e("s_waitcnt lgkmcnt(0)")
            for i in range(7):
                for tt in range(2):
                    a = ACC1 + (tt * 7 + i) * 4
                    e(f"v_mfma_f32_16x16x32_bf16 v[{a}:{a+3}], v[{WF+4*i}:{WF+4*i+3}], v[{XF+4*tt}:{XF+4*tt+3}], v[{a}:{a+3}]")
    e("s_nop 7")
    e("s_nop 3")
    e("s_mov_b32 s12, 0xbfb8aa3b")
    e("s_mov_b32 s13, 0xbfb8aa3b")
    for tt in range(2):
        for i in range(7):
            a = ACC1 + (tt * 7 + i) * 4
            dst = 20 + (tt * 3 + i // 2) * 4 + (i & 1) * 2 if i < 6 else 44 + 2 * tt
            for h in range(2):
                x = a + 2 * h
                e(f"""
                v_cvt_pk_bf16_f32 v60, v{x}, v{x+1}
                v_lshlrev_b32 v{x}, 16, v60
                v_and_b32 v{x+1}, 0xffff0000, v60
                v_pk_mul_f32 v[62:63], v[{x}:{x+1}], s[12:13]
                v_exp_f32 v62, v62
                v_exp_f32 v63, v63
                s_nop 0
                v_pk_add_f32 v[62:63], v[62:63], 1.0 op_sel_hi:[1,0]
                v_rcp_f32 v62, v62
                v_rcp_f32 v63, v63
                s_nop 0
                v_pk_mul_f32 v[62:63], v[62:63], v[{x}:{x+1}]
                v_cvt_pk_bf16_f32 v{dst+h}, v62, v63
                """)
    e("s_nop 1")
    for n in range(7):
        b = 20 + 4 * n
        e(f"v_permlane16_swap_b32 v{b}, v{b+2}")
        e(f"v_permlane16_swap_b32 v{b+1}, v{b+3}")
    e(f"""
    v_and_b32 v60, 1, v4
    v_lshrrev_b32 v61, 1, v4
    v_lshlrev_b32 v61, 8, v61
    v_lshl_add_u32 v61, v3, 4, v61
    v_lshl_add_u32 v62, v60, 9, v61
    v_mul_u32_u24 v60, 57344, v60
    v_add_u32 v63, v60, v61
    s_lshl_b32 s12, s6, 3
    s_lshl_b32 s13, s3, 1
    s_add_u32 s12, s12, s13
    s_mul_i32 s12, s12, 57344
    s_mul_i32 s13, s7, 3584
    s_add_u32 s12, s12, s13
    s_add_u32 s12, s12, {WS_HF}
    s_add_u32 s13, s12, 57344
    """)
    for tt in range(2):
        for n in range(3):
            b = 20 + (tt * 3 + n) * 4
            e(f"buffer_store_dwordx4 v[{b}:{b+3}], v62, {srd(S_WS)}, s{12+tt} offen offset:{1024*n} sc0 sc1")
    e(f"buffer_store_dwordx4 v[44:47], v63, {srd(S_WS)}, s12 offen offset:3072 sc0 sc1")

CACC = 20
CA = 60
CB = 100
def conv():
    g.c("---- conv")
    e(f"""
    s_lshr_b32 s12, s3, 1             ; ch
    s_and_b32 s13, s3, 1
    s_lshl_b32 s14, s10, 1
    s_add_u32 s14, s14, s12           ; d
    s_lshl_b32 s15, s14, 12           ; d*4096
    s_lshl_b32 s16, s13, 11           ; half*2048
    s_add_u32 s17, s15, s16
    v_lshlrev_b32 v10, 4, v1
    buffer_load_dwordx4 v[20:23], v10, {srd(S_SSMK)}, s17 offen
    buffer_load_dwordx2 v[24:25], v10, {srd(S_SSMK)}, s17 offen offset:16
    buffer_load_dwordx4 v[28:31], v10, {srd(S_SSMK)}, s17 offen offset:1024
    buffer_load_dwordx2 v[32:33], v10, {srd(S_SSMK)}, s17 offen offset:1040
    v_mov_b32 v36, 0
    v_mov_b32 v37, 0
    v_mov_b32 v38, 0
    v_mov_b32 v39, 0
    v_mov_b32 v11, 0
    buffer_load_dwordx2 v[40:41], v11, {srd(S_SSMK)}, s15 offen
    s_lshl_b32 s18, s10, 2
    s_load_dword s19, s[40:41], s18
    """)
    mask_mod8("v12", "s4", 1)
    wait_flags("v12")
    e(f"""
    s_add_u32 s17, s17, {WS_KVR}
    buffer_load_dwordx4 v[44:47], v10, {srd(S_WS)}, s17 offen sc0 sc1
    buffer_load_dwordx4 v[48:51], v10, {srd(S_WS)}, s17 offen offset:1024 sc0 sc1
    s_waitcnt vmcnt(2)
    v_and_b32 v11, 1, v1
    v_cmp_eq_u32 vcc, 1, v11
    s_nop 1
    v_cndmask_b32 v40, 0, v40, vcc
    v_cndmask_b32 v41, 0, v41, vcc
    s_mul_i32 s20, s12, {4*TP}
    s_add_u32 s20, s20, {L_TOEP}
    s_add_u32 s21, s20, s16
    v_add_u32 v13, s21, v10
    v_lshl_add_u32 v14, v11, 4, s20
    """)
    def copies(d, vaddr, off):
        e(f"""
        ds_write_b128 {vaddr}, v[{d}:{d+3}] offset:{off}
        v_alignbyte_b32 v52, v{d+1}, v{d}, 2
        v_alignbyte_b32 v53, v{d+2}, v{d+1}, 2
        v_alignbyte_b32 v54, v{d+3}, v{d+2}, 2
        v_alignbyte_b32 v55, v{d+4}, v{d+3}, 2
        ds_write_b128 {vaddr}, v[52:55] offset:{off+TP}
        v_mov_b32 v56, v{d+1}
        v_mov_b32 v57, v{d+2}
        v_mov_b32 v58, v{d+3}
        v_mov_b32 v59, v{d+4}
        ds_write_b128 {vaddr}, v[56:59] offset:{off+2*TP}
        v_mov_b32 v60, v53
        v_mov_b32 v61, v54
        v_mov_b32 v62, v55
        v_alignbyte_b32 v63, v{d+5}, v{d+4}, 2
        ds_write_b128 {vaddr}, v[60:63] offset:{off+3*TP}
        s_waitcnt lgkmcnt(0)
        """)
    copies(20, "v13", 32)
    copies(28, "v13", 32 + 1024)
    copies(36, "v14", 0)
    e(f"""
    s_mul_i32 s22, s12, {URP}
    s_add_u32 s22, s22, {L_UR}
    s_add_u32 s23, s22, s16
    v_add_u32 v13, s23, v10
    v_add_u32 v14, s22, v10
    s_waitcnt vmcnt(0)
    ds_write_b128 v13, v[44:47]
    ds_write_b128 v13, v[48:51] offset:1024
    ds_write_b128 v14, v[36:39] offset:4096
    s_waitcnt lgkmcnt(0)
    s_barrier
    """)
    e(f"""
    v_add_u32 v10, 1, v3
    v_and_b32 v11, 3, v10
    v_sub_u32 v10, v10, v11
    v_mul_u32_u24 v11, {TP}, v11
    v_lshl_add_u32 v13, v10, 1, v11
    v_lshl_add_u32 v13, v4, 4, v13
    s_lshl_b32 s23, s13, 8
    s_add_u32 s24, s20, s23
    v_add_u32 v13, s24, v13
    v_lshlrev_b32 v10, 5, v3
    v_lshlrev_b32 v11, 4, v4
    v_sub_u32 v14, v11, v10
    s_add_u32 s24, s22, s23
    s_add_u32 s24, s24, 480
    v_add_u32 v14, s24, v14
    """)
    for r in range(32):
        e(f"v_mov_b32 v{CACC+r}, 0")
    for b0 in range(4):
        for b1 in range(8):
            for hh in range(2):
                e(f"ds_read_b64 v[{CA+4*b1+2*hh}:{CA+4*b1+2*hh+1}], v13 offset:{64*(8*b1+b0)+8*hh}")
        for x in range(8):
            e(f"ds_read_b128 v[{CB+4*x}:{CB+4*x+3}], v14 offset:{64*b0+512*(7-x)}")
        e("s_waitcnt lgkmcnt(0)")
        for x in range(8):
            for b1 in range(8 - x):
                a = CACC + 4 * (x + b1)
                e(f"v_mfma_f32_16x16x32_bf16 v[{a}:{a+3}], v[{CA+4*b1}:{CA+4*b1+3}], v[{CB+4*x}:{CB+4*x+3}], v[{a}:{a+3}]")
    e("s_nop 7")
    e("s_nop 3")
    e("s_barrier")
    e(f"""
    v_lshlrev_b32 v10, 4, v1
    s_lshl_b32 s23, s3, 12
    s_add_u32 s23, s23, {L_CRED}
    v_add_u32 v11, s23, v10
    s_xor_b32 s24, s3, 1
    s_lshl_b32 s24, s24, 12
    s_add_u32 s24, s24, {L_CRED}
    v_add_u32 v12, s24, v10
    s_cmp_eq_u32 s13, 0
    s_cbranch_scc1 L_cr_e0
    """)
    for n in range(4):
        e(f"ds_write_b128 v11, v[{CACC+4*n}:{CACC+4*n+3}] offset:{1024*n}")
    e("s_waitcnt lgkmcnt(0)")
    for r in range(16):
        e(f"v_mov_b32 v{CACC+r}, v{CACC+16+r}")
    e("s_branch L_cr_join")
    g.lab("L_cr_e0")
    for n in range(4):
        e(f"ds_write_b128 v11, v[{CACC+16+4*n}:{CACC+16+4*n+3}] offset:{1024*n}")
    g.lab("L_cr_join")
    e("s_waitcnt lgkmcnt(0)")
    e("s_barrier")
    for n in range(4):
        e(f"ds_read_b128 v[{CA+4*n}:{CA+4*n+3}], v12 offset:{1024*n}")
    e(f"""
    v_lshlrev_b32 v10, 5, v3
    v_lshl_add_u32 v10, v4, 3, v10    ; 2*(16n+4q)
    s_lshl_b32 s23, s13, 11           ; e*4*512
    s_sub_u32 s24, s22, s23
    s_add_u32 s24, s24, {4088 - 1536}
    v_sub_u32 v11, s24, v10
    """)
    for n in range(4):
        e(f"ds_read_b64 v[{CB+2*n}:{CB+2*n+1}], v11 offset:{1536 - 512*n}")
    e(f"""
    s_waitcnt lgkmcnt(0)
    s_lshl_b32 s24, s12, 4
    s_lshr_b32 s24, s19, s24
    s_lshl_b32 s24, s24, 16           ; D[d] as f32
    """)
    for n in range(4):
        a = CACC + 4 * n
        for r in range(4):
            e(f"v_add_f32 v{a+r}, v{a+r}, v{CA+4*n+r}")
        e(f"""
        v_and_b32 v80, 0xffff0000, v{CB+2*n+1}
        v_lshlrev_b32 v81, 16, v{CB+2*n+1}
        v_and_b32 v82, 0xffff0000, v{CB+2*n}
        v_lshlrev_b32 v83, 16, v{CB+2*n}
        v_fma_f32 v{a}, v80, s24, v{a}
        v_fma_f32 v{a+1}, v81, s24, v{a+1}
        v_fma_f32 v{a+2}, v82, s24, v{a+2}
        v_fma_f32 v{a+3}, v83, s24, v{a+3}
        v_cvt_pk_bf16_f32 v{84+2*n}, v{a}, v{a+1}
        v_cvt_pk_bf16_f32 v{85+2*n}, v{a+2}, v{a+3}
        """)
    e(f"""
    s_lshl_b32 s23, s3, 11
    s_add_u32 s23, s23, {L_CRED + 16384}
    v_add_u32 v11, s23, v10
    v_lshlrev_b32 v12, 4, v1
    v_add_u32 v13, s23, v12
    """)
    for n in range(4):
        e(f"ds_write_b64 v11, v[{84+2*n}:{85+2*n}] offset:{512*n}")
    e(f"""
    s_waitcnt lgkmcnt(0)
    ds_read_b128 v[92:95], v13
    ds_read_b128 v[96:99], v13 offset:1024
    s_add_u32 s17, s15, s16
    s_add_u32 s17, s17, {WS_Y2}
    s_waitcnt lgkmcnt(0)
    buffer_store_dwordx4 v[92:95], v12, {srd(S_WS)}, s17 offen sc0 sc1
    buffer_store_dwordx4 v[96:99], v12, {srd(S_WS)}, s17 offen offset:1024 sc0 sc1
    """)

ACC2 = 20
W2F = 100
def gemm2():
    g.c("---- GEMM2")
    e(f"""
    v_lshrrev_b32 v10, 3, v1          ; row'
    v_bfe_u32 v11, v1, 1, 2           ; pospair
    v_and_b32 v12, 1, v1              ; e
    v_bfe_u32 v13, v10, 1, 1          ; (row'>>1)&1
    v_xor_b32 v11, v11, v13
    v_xor_b32 v13, 2, v11
    v_lshlrev_b32 v10, 10, v10
    v_lshl_add_u32 v10, v12, 4, v10
    v_lshl_add_u32 v5, v11, 5, v10
    v_lshl_add_u32 v6, v13, 5, v10
    v_add_u32 v6, 0x2000, v6
    s_mul_i32 s20, s3, {448*1024}
    s_lshl_b32 s21, s9, 7
    s_add_u32 s20, s20, s21
    s_mul_i32 s21, s3, {W2RING}
    """)
    def w2_issue(s):
        slot = s % 7
        e(f"s_add_u32 s25, s21, {slot*4096}")
        e(f"s_add_u32 s26, s20, {s*32*1024}")
        for jj in range(4):
            e("s_mov_b32 m0, s25")
            e("s_add_u32 s25, s25, 1024")
            e(f"buffer_load_dwordx4 v{5+(jj&1)}, {srd(S_W2)}, s26 offen lds")
            if jj == 1:
                e("s_add_u32 s26, s26, 0x4000")
    for s in range(7):
        w2_issue(s)
    e(f"""
    v_lshrrev_b32 v10, 3, v1
    v_and_b32 v11, 7, v1
    v_lshlrev_b32 v10, 10, v10
    v_lshl_add_u32 v10, v11, 4, v10
    s_lshl_b32 s22, s8, 6
    s_lshl_b32 s23, s3, 4
    s_add_u32 s22, s22, s23           ; row0
    s_lshl_b32 s22, s22, 10
    s_lshl_b32 s23, s9, 7
    s_add_u32 s22, s22, s23
    s_lshl_b32 s23, s3, 11
    s_add_u32 s23, s23, {L_QT}
    s_mov_b32 m0, s23
    s_add_u32 s23, s23, 1024
    buffer_load_dwordx4 v10, {srd(S_Q)}, s22 offen lds
    s_add_u32 s22, s22, 8192
    s_mov_b32 m0, s23
    s_nop 0
    buffer_load_dwordx4 v10, {srd(S_Q)}, s22 offen lds
    """)
    e(f"""
    v_bfe_u32 v10, v1, 2, 2           ; r
    v_lshrrev_b32 v11, 1, v10
    v_and_b32 v12, 1, v4
    v_lshl_add_u32 v11, v12, 1, v11   ; s(k)
    v_lshl_add_u32 v10, v4, 3, v10    ; 8q + r
    v_lshlrev_b32 v10, 7, v10
    v_and_b32 v12, 3, v1
    v_lshl_add_u32 v10, v12, 3, v10
    v_add_u32 v10, s21, v10
    """)
    for i in range(4):
        e(f"v_xor_b32 v12, {i}, v11")
        e(f"v_lshl_add_u32 v{14+i}, v12, 5, v10")
    e("s_lshr_b32 s27, s8, 1")
    mask_rb("v18", "s27", 2)
    wait_flags("v18")
    e(f"""
    v_lshlrev_b32 v10, 4, v1
    s_mul_i32 s22, s3, {14*1024}
    s_add_u32 s22, s22, {WS_HF}
    """)
    for tau in range(4):
        e(f"""
        s_add_u32 s23, s3, {tau}
        s_and_b32 s23, s23, 3
        s_lshl_b32 s24, s8, 2
        s_add_u32 s23, s23, s24
        s_mul_i32 s23, s23, 57344
        s_add_u32 s{28+tau}, s23, s22
        """)
    for s in range(14):
        for tau in range(4):
            a = (s * 4 + tau) * 4
            e(f"buffer_load_dwordx4 a[{a}:{a+3}], v10, {srd(S_WS)}, s{28+tau} offen offset:{1024*(s&3)} sc0 sc1")
        if s & 3 == 3:
            for tau in range(4):
                e(f"s_add_u32 s{28+tau}, s{28+tau}, 4096")
        if s == 6:
            e("s_waitcnt vmcnt(0)")
    for r in range(64):
        e(f"v_mov_b32 v{ACC2+r}, 0")
    e("s_waitcnt vmcnt(0)")
    for s in range(14):
        slot = s % 7
        if s >= 7:
            e(f"s_waitcnt vmcnt({(13 - s) * 4})")
        for i in range(4):
            for hh in range(2):
                e(f"ds_read_b64_tr_b16 v[{W2F+4*i+2*hh}:{W2F+4*i+2*hh+1}], v{14+i} offset:{slot*4096+hh*512}")
        e("s_waitcnt lgkmcnt(0)")
        if s + 7 < 14:
            w2_issue(s + 7)
        for i in range(4):
            for tau in range(4):
                a = ACC2 + (i * 4 + tau) * 4
                h = (s * 4 + tau) * 4
                e(f"v_mfma_f32_16x16x32_bf16 v[{a}:{a+3}], v[{W2F+4*i}:{W2F+4*i+3}], a[{h}:{h+3}], v[{a}:{a+3}]")
    e("s_nop 7")
    e("s_nop 3")
    e("s_barrier")
    e("v_lshlrev_b32 v10, 4, v1")
    for tau in range(1, 4):
        e(f"""
        s_add_u32 s23, s3, {tau}
        s_and_b32 s23, s23, 3
        s_mul_i32 s23, s23, 12288
        s_add_u32 s23, s23, {L_RED + (tau-1)*4096}
        v_add_u32 v11, s23, v10
        """)
        for i in range(4):
            a = ACC2 + (i * 4 + tau) * 4
            e(f"ds_write_b128 v11, v[{a}:{a+3}] offset:{1024*i}")
    mask_mod8("v18", "s9", 4)
    wait_flags("v18")
    e(f"""
    v_lshrrev_b32 v11, 3, v1
    v_and_b32 v12, 7, v1
    v_lshlrev_b32 v11, 12, v11
    v_lshl_add_u32 v11, v12, 4, v11
    s_lshl_b32 s22, s9, 6
    s_lshl_b32 s23, s3, 4
    s_add_u32 s22, s22, s23           ; d0 = 64cb2 + 16w
    s_lshl_b32 s22, s22, 12
    s_lshl_b32 s23, s8, 7
    s_add_u32 s22, s22, s23
    s_add_u32 s22, s22, {WS_Y2}
    s_add_u32 s23, s22, 32768
    buffer_load_dwordx4 v[120:123], v11, {srd(S_WS)}, s22 offen sc0 sc1
    buffer_load_dwordx4 v[124:127], v11, {srd(S_WS)}, s23 offen sc0 sc1
    s_lshl_b32 s22, s8, 6
    s_lshl_b32 s23, s3, 4
    s_add_u32 s22, s22, s23
    s_lshl_b32 s23, s22, 2
    s_add_u32 s23, s23, {WS_G}
    v_lshlrev_b32 v12, 2, v3
    buffer_load_dword v128, v12, {srd(S_WS)}, s23 offen sc0 sc1
    s_lshl_b32 s23, s3, 11
    s_add_u32 s23, s23, {L_YT}
    v_add_u32 v12, s23, v10
    s_waitcnt vmcnt(0)
    ds_write_b128 v12, v[120:123]
    ds_write_b128 v12, v[124:127] offset:1024
    s_waitcnt lgkmcnt(0)
    s_barrier
    s_mul_i32 s23, s3, 12288
    s_add_u32 s23, s23, {L_RED}
    v_add_u32 v11, s23, v10
    """)
    for n in range(12):
        e(f"ds_read_b128 v[{130+4*n}:{133+4*n}], v11 offset:{1024*n}")
    e(f"""
    v_lshlrev_b32 v12, 7, v3
    v_lshl_add_u32 v12, v4, 3, v12
    s_lshl_b32 s23, s3, 11
    s_add_u32 s23, s23, {L_QT}
    v_add_u32 v12, s23, v12
    v_lshrrev_b32 v13, 2, v1          ; 4q4 + r'
    v_lshlrev_b32 v13, 7, v13
    v_and_b32 v14, 3, v1
    v_lshl_add_u32 v13, v14, 3, v13
    s_lshl_b32 s23, s3, 5
    s_add_u32 s23, s23, {L_YT}
    v_add_u32 v13, s23, v13
    """)
    for i in range(4):
        e(f"ds_read_b64 v[{180+2*i}:{181+2*i}], v12 offset:{32*i}")
        e(f"ds_read_b64_tr_b16 v[{190+2*i}:{191+2*i}], v13 offset:{2048*i}")
    e("""
    s_waitcnt lgkmcnt(0)
    v_sub_f32 v129, 1.0, v128
    v_cvt_pk_bf16_f32 v129, v129, v129
    v_lshlrev_b32 v129, 16, v129      ; bf16(1-g)
    """)
    for i in range(4):
        a = ACC2 + (i * 4) * 4
        for r in range(4):
            for tau in range(3):
                e(f"v_add_f32 v{a+r}, v{a+r}, v{130 + (tau*4+i)*4 + r}")
        for h in range(2):
            x = a + 2 * h
            qd = 180 + 2 * i + h
            yd = 190 + 2 * i + h
            e(f"""
            v_cvt_pk_bf16_f32 v200, v{x}, v{x+1}
            v_lshlrev_b32 v{x}, 16, v200
            v_and_b32 v{x+1}, 0xffff0000, v200      ; b rounded
            v_mul_f32 v{x}, v129, v{x}
            v_mul_f32 v{x+1}, v129, v{x+1}
            v_cvt_pk_bf16_f32 v200, v{x}, v{x+1}
            v_lshlrev_b32 v{x}, 16, v200
            v_and_b32 v{x+1}, 0xffff0000, v200      ; (1-g)*b rounded
            v_lshlrev_b32 v202, 16, v{qd}
            v_and_b32 v203, 0xffff0000, v{qd}
            v_lshlrev_b32 v204, 16, v{yd}
            v_and_b32 v205, 0xffff0000, v{yd}
            v_mul_f32 v202, v202, v204
            v_mul_f32 v203, v203, v205
            v_cvt_pk_bf16_f32 v200, v202, v203
            v_lshlrev_b32 v202, 16, v200
            v_and_b32 v203, 0xffff0000, v200        ; a
            v_mul_f32 v202, v128, v202
            v_mul_f32 v203, v128, v203
            v_cvt_pk_bf16_f32 v200, v202, v203
            v_lshlrev_b32 v202, 16, v200
            v_and_b32 v203, 0xffff0000, v200        ; g*a
            v_add_f32 v202, v202, v{x}
            v_add_f32 v203, v203, v{x+1}
            v_cvt_pk_bf16_f32 v{208+2*i+h}, v202, v203
            """)
    e(f"""
    s_nop 1
    v_permlane16_swap_b32 v208, v210
    v_permlane16_swap_b32 v209, v211
    v_permlane16_swap_b32 v212, v214
    v_permlane16_swap_b32 v213, v215
    v_and_b32 v11, 1, v4
    v_lshrrev_b32 v12, 1, v4
    v_lshlrev_b32 v12, 4, v12
    v_lshl_add_u32 v12, v11, 5, v12
    v_lshl_add_u32 v12, v3, 10, v12
    s_lshl_b32 s22, s22, 10
    s_lshl_b32 s23, s9, 7
    s_add_u32 s22, s22, s23
    buffer_store_dwordx4 v[208:211], v12, {srd(S_OUT)}, s22 offen
    buffer_store_dwordx4 v[212:215], v12, {srd(S_OUT)}, s22 offen offset:64
    """)

prologue()
g1_setup()
for c in range(NSLOT):
    g1_issue(c)
e("s_waitcnt vmcnt(0)")
phase0()
signal(1)
gemm1()
signal(3)
conv()
signal(7)
gemm2()
g.lab("L_end")
e("s_endpgm")

body = "\n".join(g.L)
out = HEADER + f"""; Override launch geometry by editing the next line (default: block=256,
; grid=ceil(out_elems/256), lds=0). Harness parses it; keep it on one line.
; @launch grid=(256,1,1) block=(256,1,1) lds={LDS_TOTAL}
.amdgcn_target "amdgcn-amd-amdhsa--gfx950"
.text
.globl {KNAME}
.p2align 8
.type {KNAME},@function
{KNAME}:
{body}
.section .rodata,"a"
.p2align 6
.amdhsa_kernel {KNAME}
  .amdhsa_next_free_vgpr 512
  .amdhsa_next_free_sgpr 102
  .amdhsa_accum_offset 256
  .amdhsa_group_segment_fixed_size 0
  .amdhsa_kernarg_size 104
  .amdhsa_user_sgpr_count 2
  .amdhsa_user_sgpr_kernarg_segment_ptr 1
  .amdhsa_system_sgpr_workgroup_id_x 1
.end_amdhsa_kernel
"""
dst = sys.argv[1] if len(sys.argv) > 1 else "gated_mix__ssm_conv_h3__dense_activation_silu__prompt.s"
open(dst, "w").write(out)
print("wrote", dst, len(out), "bytes", len(g.L), "lines")
```

```python
import sys, os

KNAME = "gated_mix__ssm_conv_h3__dense_activation_silu__prompt_kernel"
HEADER = open("gated_mix__ssm_conv_h3__dense_activation_silu__prompt.s.ref").read().split("; Override launch")[0]
STAMPS = bool(os.environ.get('STAMPS'))

WS_KVR = 0
WS_HF  = 2 << 20
WS_Y2  = 10 << 20
WS_G   = 12 << 20
WS_MB  = (12 << 20) + 65536
MB_KV = WS_MB
MB_H  = WS_MB + 4096
MB_Y  = WS_MB + 16384
WS_STAMP = 13 << 20
WS_SIZE = 14 << 20

SLOT = 30720
NSLOT = 5
WG_ = [98304, 114688, 131072, 147456, 0, 16384, 32768]
L_TOEP = 49152
TP = 4160
L_UR = L_TOEP + 2 * 4 * TP
URP = 5120
L_NONCE = 97280
LDS_TOTAL = 163840
L_CRED = L_TOEP
L_QT = 73728
L_YT = L_TOEP + 8192
L_RED = 98304
L_NONCE = 163832

class G:
    def __init__(self):
        self.L = []
        self.nlab = 0
        self.vmq = []; self.vmdone = 0
        self.dsq = []; self.dsdone = 0
    def e(self, s):
        for line in s.strip("\n").split("\n"):
            if line.strip():
                self.L.append("    " + line.strip())
    def c(self, s):
        self.L.append("    ; " + s)
    def lab(self, l):
        self.L.append(l + ":")
    def newlab(self, p="L"):
        self.nlab += 1
        return f"{p}_{self.nlab}"
    def vm(self, s, tag=None):
        self.e(s); self.vmq.append(tag)
    def ds(self, s, tag=None):
        self.e(s); self.dsq.append(tag)
    def _need(self, q, done, tags, cap):
        idx = -1
        for t in tags:
            pos = [i for i, x in enumerate(q) if x == t]
            assert pos, f"tag {t} not issued"
            idx = max(idx, pos[-1])
        if idx + 1 <= done: return None, done
        n = len(q) - 1 - idx
        if n > cap: n = cap
        return n, len(q) - n
    def wvm(self, *tags):
        n, self.vmdone = self._need(self.vmq, self.vmdone, tags, 63)
        if n is not None: self.e(f"s_waitcnt vmcnt({n})")
    def wds(self, *tags):
        n, self.dsdone = self._need(self.dsq, self.dsdone, tags, 15)
        if n is not None: self.e(f"s_waitcnt lgkmcnt({n})")
    def wvm_all(self):
        self.e("s_waitcnt vmcnt(0)"); self.vmdone = len(self.vmq)
    def wds_all(self):
        self.e("s_waitcnt lgkmcnt(0)"); self.dsdone = len(self.dsq)

g = G()
e = g.e

def merge(main, side, start=0, per=1, every=1):
    side = list(side)
    for j, m in enumerate(main):
        m()
        if j >= start and (j - start) % every == 0:
            for _ in range(per):
                if side: side.pop(0)()
    for s_ in side: s_()

S_Q, S_K, S_V, S_SSMK, S_W1, S_W2, S_OUT, S_DBG, S_WS, S_SK, S_GW = [44 + 4 * i for i in range(11)]
def srd(b): return f"s[{b}:{b+3}]"

def stamp(i):
    if not STAMPS: return
    e("s_memrealtime s[98:99]")
    e("s_memtime s[100:101]")
    g.wds_all()
    e("v_mov_b32 v254, s98")
    e("v_mov_b32 v255, s100")
    e("s_lshl_b32 s98, s2, 2")
    e("s_add_u32 s98, s98, s3")
    e("s_lshl_b32 s98, s98, 8")
    e(f"s_add_u32 s98, s98, {WS_STAMP + 8*i}")
    e("v_mov_b32 v253, 0")
    e("s_mov_b64 exec, 1")
    g.vm(f"buffer_store_dwordx2 v[254:255], v253, {srd(S_WS)}, s98 offen")
    e("s_mov_b64 exec, -1")

def prologue():
    e("s_cmp_ge_u32 s2, 256")
    e("s_cbranch_scc1 L_end")
    for (b, off) in ((S_K, 8), (S_V, 16), (S_Q, 0), (S_W1, 56), (S_SK, 24), (S_GW, 72), (S_DBG, 88), (S_WS, 96), (S_SSMK, 32), (S_W2, 64), (S_OUT, 80)):
        e(f"s_load_dwordx2 s[{b}:{b+1}], s[0:1], {off}")
    e("s_load_dwordx2 s[40:41], s[0:1], 40")
    e("s_memrealtime s[42:43]")
    e("""
    v_and_b32 v1, 63, v0          ; lane
    v_lshrrev_b32 v2, 6, v0       ; wave
    s_and_b32 s4, s2, 7           ; xcd
    s_lshr_b32 s5, s2, 3          ; idx
    v_readfirstlane_b32 s3, v2
    """)
    e("""
    s_getpc_b64 s[12:13]
L_pc:
    s_lshl_b32 s14, s5, 2
    s_add_u32 s14, s14, s3
    s_lshl_b32 s14, s14, 10
    s_cmp_lt_u32 s14, (L_codeend - L_pc - 1024)
    s_cselect_b32 s14, s14, 0
    v_lshlrev_b32 v5, 4, v1
    v_add_u32 v5, s14, v5
    """)
    g.vm("global_load_dwordx4 v[248:251], v5, s[12:13]", "codepf")
    for (b, n) in ((S_Q, 2 << 20), (S_K, 2 << 20), (S_V, 2 << 20), (S_SK, 4096), (S_SSMK, 2 << 20), (S_W1, 1835008), (S_W2, 1835008), (S_GW, 1024), (S_OUT, 2 << 20), (S_DBG, 256), (S_WS, WS_SIZE)):
        e(f"s_mov_b32 s{b+2}, {n}")
        e(f"s_mov_b32 s{b+3}, 0x00020000")
    e("""
    s_lshr_b32 s6, s4, 1
    s_lshl_b32 s6, s6, 2
    s_and_b32 s7, s5, 3
    s_add_u32 s6, s6, s7
    s_and_b32 s7, s4, 1
    s_lshl_b32 s7, s7, 3
    s_lshr_b32 s8, s5, 2
    s_add_u32 s7, s7, s8
    s_lshl_b32 s8, s4, 2
    s_and_b32 s9, s5, 3
    s_add_u32 s8, s8, s9
    s_lshr_b32 s9, s5, 2
    s_lshl_b32 s10, s4, 5
    s_add_u32 s10, s10, s5
    v_and_b32 v3, 15, v1          ; l&15
    v_lshrrev_b32 v4, 4, v1       ; q = l>>4
    """)

def p0_addr():
    e(f"""
    v_and_b32 v10, 31, v1             ; p
    v_lshrrev_b32 v11, 5, v1
    v_lshl_add_u32 v11, v2, 1, v11    ; rg = 2w + (l>>5)
    s_lshl_b32 s12, s5, 6
    v_lshl_add_u32 v11, v11, 3, s12
    s_lshl_b32 s13, s4, 7
    v_lshl_add_u32 v12, v10, 2, s13
    v_lshl_add_u32 v13, v11, 10, v12  ; voff0
    v_subrev_u32 v14, 3072, v13       ; voffn
    v_mov_b32 v15, 0x80000000
    v_cmp_eq_u32 vcc, 0, v11
    s_mov_b32 s14, 4096
    s_lshl_b32 s15, s6, 7
    v_cndmask_b32 v14, v14, v15, vcc
    v_lshlrev_b32 v15, 2, v12
    s_lshl_b32 s16, s7, 3
    s_add_u32 s15, s15, s16
    s_lshl_b32 s16, s3, 1
    s_add_u32 s15, s15, s16
    s_lshl_b32 s16, s15, 10
    v_lshlrev_b32 v16, 4, v1
    """)
def p0_loads():
    for j in range(3):
        g.vm(f"buffer_load_dword v{20+j}, v14, {srd(S_K)}, 0 offen offset:{1024*j}", "p0")
    for j in range(8):
        so = "0" if j < 4 else "s14"
        g.vm(f"buffer_load_dword v{23+j}, v13, {srd(S_K)}, {so} offen offset:{1024*(j&3)}", "p0")
    for j in range(8):
        so = "0" if j < 4 else "s14"
        g.vm(f"buffer_load_dword v{32+j}, v13, {srd(S_V)}, {so} offen offset:{1024*(j&3)}", "p0")
    g.vm(f"buffer_load_dwordx4 v[40:43], v15, {srd(S_SK)}, 0 offen", "p0")
    g.vm(f"buffer_load_dwordx4 v[44:47], v16, {srd(S_Q)}, s16 offen", "p0g")
    g.vm(f"buffer_load_dwordx4 v[48:51], v16, {srd(S_Q)}, s16 offen offset:1024", "p0g")
    g.vm(f"buffer_load_dwordx4 v[52:55], v16, {srd(S_GW)}, 0 offen", "p0g")

def p0_compute():
    g.c("---- phase 0 compute")
    g.wvm("p0")
    for i in range(11):
        e(f"v_lshlrev_b32 v{60+2*i}, 16, v{20+i}")
        e(f"v_and_b32 v{61+2*i}, 0xffff0000, v{20+i}")
    for j in range(8):
        e(f"v_lshlrev_b32 v{84+2*j}, 16, v{32+j}")
        e(f"v_and_b32 v{85+2*j}, 0xffff0000, v{32+j}")
    e("""
    v_lshlrev_b32 v100, 16, v40
    v_lshlrev_b32 v101, 16, v42
    v_and_b32 v102, 0xffff0000, v40
    v_and_b32 v103, 0xffff0000, v42
    v_lshlrev_b32 v104, 16, v41
    v_lshlrev_b32 v105, 16, v43
    v_and_b32 v106, 0xffff0000, v41
    v_and_b32 v107, 0xffff0000, v43
    """)
    def K(i): return f"v[{60+2*i}:{61+2*i}]"
    def S(i): return f"v[{100+2*i}:{101+2*i}]"
    def A(j): return f"v[{110+2*j}:{111+2*j}]"
    for j in range(8): e(f"v_pk_mul_f32 {A(j)}, {K(j)}, {S(3)}")
    for j in range(8): e(f"v_pk_fma_f32 {A(j)}, {K(j+1)}, {S(2)}, {A(j)}")
    for j in range(8): e(f"v_pk_fma_f32 {A(j)}, {K(j+2)}, {S(1)}, {A(j)}")
    for j in range(8): e(f"v_pk_fma_f32 {A(j)}, {K(j+3)}, {S(0)}, {A(j)}")
    for j in range(8): e(f"v_pk_mul_f32 {A(j)}, {A(j)}, v[{84+2*j}:{85+2*j}]")
    for ch in range(2):
        for m in range(4):
            e(f"v_cvt_pk_bf16_f32 v{128+4*ch+m}, v{110+2*(7-2*m)+ch}, v{110+2*(6-2*m)+ch}")
    e(f"""
    v_lshlrev_b32 v17, 11, v12
    v_lshlrev_b32 v18, 1, v11
    v_sub_u32 v17, v17, v18
    v_add_u32 v17, {WS_KVR + 4080}, v17
    """)
    g.vm(f"buffer_store_dwordx4 v[128:131], v17, {srd(S_WS)}, 0 offen sc1", "kvst")
    g.vm(f"buffer_store_dwordx4 v[132:135], v17, {srd(S_WS)}, s14 offen sc1", "kvst")
    g.wvm("p0g")
    for i in range(4):
        e(f"v_lshlrev_b32 v{60+2*i}, 16, v{52+i}")
        e(f"v_and_b32 v{61+2*i}, 0xffff0000, v{52+i}")
    for r in range(2):
        b = 70 + 10 * r
        for i in range(4):
            e(f"v_lshlrev_b32 v{b+2*i}, 16, v{44+4*r+i}")
            e(f"v_and_b32 v{b+2*i+1}, 0xffff0000, v{44+4*r+i}")
        for i in range(4):
            e(f"v_pk_mul_f32 v[{b+2*i}:{b+2*i+1}], v[{b+2*i}:{b+2*i+1}], v[{60+2*i}:{61+2*i}]")
        for i in range(4):
            e(f"v_cvt_pk_bf16_f32 v{90+i}, v{b+2*i}, v{b+2*i+1}")
        for i in range(4):
            e(f"v_lshlrev_b32 v{b+2*i}, 16, v{90+i}")
            e(f"v_and_b32 v{b+2*i+1}, 0xffff0000, v{90+i}")
        e(f"v_pk_add_f32 v[{b}:{b+1}], v[{b}:{b+1}], v[{b+2}:{b+3}]")
        e(f"v_pk_add_f32 v[{b+4}:{b+5}], v[{b+4}:{b+5}], v[{b+6}:{b+7}]")
        e(f"v_pk_add_f32 v[{b}:{b+1}], v[{b}:{b+1}], v[{b+4}:{b+5}]")
        e(f"v_add_f32 v{96+r}, v{b}, v{b+1}")
    for r in (96, 97):
        e("s_nop 1")
        for ctl in ("row_shr:1", "row_shr:2", "row_shr:4", "row_shr:8"):
            e(f"v_add_f32_dpp v{r}, v{r}, v{r} {ctl} row_mask:0xf bank_mask:0xf bound_ctrl:0")
            e("s_nop 1")
        e(f"v_add_f32_dpp v{r}, v{r}, v{r} row_bcast:15 row_mask:0xa bank_mask:0xf")
        e("s_nop 1")
        e(f"v_add_f32_dpp v{r}, v{r}, v{r} row_bcast:31 row_mask:0xc bank_mask:0xf")
    e(f"""
    s_nop 1
    v_readlane_b32 s16, v96, 63
    v_readlane_b32 s17, v97, 63
    v_cmp_eq_u32 vcc, 1, v1
    v_mov_b32 v96, s16
    v_mov_b32 v98, s17
    v_cndmask_b32 v96, v96, v98, vcc
    v_cvt_pk_bf16_f32 v96, v96, v96
    v_lshlrev_b32 v96, 16, v96
    v_mul_f32 v96, 0xbfb8aa3b, v96    ; -log2e * x
    v_exp_f32 v96, v96
    s_lshl_b32 s16, s15, 2
    v_add_f32 v96, 1.0, v96
    v_rcp_f32 v96, v96
    s_add_u32 s16, s16, {WS_G}
    v_cvt_pk_bf16_f32 v96, v96, v96
    v_lshlrev_b32 v96, 16, v96
    v_lshlrev_b32 v97, 2, v1
    s_mov_b64 exec, 3
    """)
    g.vm(f"buffer_store_dword v96, v97, {srd(S_WS)}, s16 offen sc1", "gst")
    e("s_mov_b64 exec, -1")

VX_E, VX_O, VW1S = 236, 237, 238
VXR0, VXR1, VW1R = 239, 240, 241
VW2E, VW2O = 242, 243
VL16 = 244
def g1_setup():
    e(f"""
    v_lshrrev_b32 v5, 3, v1
    v_and_b32 v6, 7, v1
    v_lshrrev_b32 v7, 1, v5
    v_xor_b32 v7, v7, v6
    v_xor_b32 v8, 4, v7
    v_lshlrev_b32 v5, 10, v5
    v_lshl_add_u32 v5, v2, 15, v5
    v_lshl_add_u32 v{VX_E}, v7, 4, v5
    v_lshl_add_u32 v{VX_O}, v8, 4, v5
    v_add_u32 v{VX_O}, 0x2000, v{VX_O}
    v_mul_u32_u24 v5, 4682, v1
    v_lshrrev_b32 v5, 16, v5          ; l/14
    v_mul_u32_u24 v6, 14, v5
    v_sub_u32 v6, v1, v6              ; l%14
    v_mul_u32_u24 v5, 3584, v5
    v_lshl_add_u32 v{VW1S}, v6, 4, v5
    v_mul_u32_u24 v5, 14336, v2
    v_add_u32 v{VW1S}, v{VW1S}, v5
    s_lshl_b32 s20, s6, 17
    s_mul_i32 s21, s7, 224
    s_lshl_b32 s22, s3, 12
    s_and_b32 s23, s3, 1
    s_lshl_b32 s23, s23, 1
    s_lshr_b32 s24, s3, 1
    s_add_u32 s23, s23, s24           ; perm[w]
    s_mul_i32 s23, s23, 896
    s_add_u32 s23, s23, 16384
    """)
def g1_setup2():
    e(f"""
    v_lshrrev_b32 v5, 1, v3           ; t>>1
    v_xor_b32 v5, v5, v4              ; q ^ (t>>1)
    v_lshlrev_b32 v5, 4, v5
    v_lshl_add_u32 v5, v3, 7, v5      ; t*128 + ..
    v_lshl_add_u32 v{VXR0}, v2, 12, v5
    v_xor_b32 v{VXR1}, 64, v{VXR0}
    v_lshrrev_b32 v5, 1, v4           ; q>>1
    v_and_b32 v6, 1, v4
    v_lshl_add_u32 v5, v5, 2, v6      ; 4(q>>1)+(q&1)
    v_mul_u32_u24 v5, 896, v5
    v_bfe_u32 v6, v1, 2, 2            ; r
    v_mul_u32_u24 v6, 224, v6
    v_add_u32 v5, v5, v6
    v_and_b32 v6, 3, v1
    v_lshl_add_u32 v{VW1R}, v6, 3, v5
    v_add_u32 v{VW1R}, 16384, v{VW1R}
    v_lshlrev_b32 v{VL16}, 4, v1
    v_lshrrev_b32 v5, 3, v1           ; row'
    v_bfe_u32 v6, v1, 1, 2            ; pospair
    v_and_b32 v7, 1, v1               ; e
    v_bfe_u32 v8, v5, 1, 1            ; (row'>>1)&1
    v_xor_b32 v6, v6, v8
    v_xor_b32 v8, 2, v6
    v_lshlrev_b32 v5, 10, v5
    v_lshl_add_u32 v5, v7, 4, v5
    v_lshl_add_u32 v{VW2E}, v6, 5, v5
    v_lshl_add_u32 v{VW2O}, v8, 5, v5
    v_add_u32 v{VW2O}, 0x2000, v{VW2O}
    s_mul_i32 s30, s3, {448*1024}
    s_lshl_b32 s31, s9, 7
    s_add_u32 s30, s30, s31
    """)

def g1_issue_items(c):
    slot = c % NSLOT
    items = []
    def xi(j):
        def f():
            e(f"s_add_u32 s25, s22, {slot*SLOT + 1024*j}")
            e(f"s_add_u32 s26, s20, {128*c + (0x4000 if j >= 2 else 0)}")
            e("s_mov_b32 m0, s25")
            e("s_nop 0")
            g.vm(f"buffer_load_dwordx4 v{VX_E + (j&1)}, {srd(S_Q)}, s26 offen lds", f"c{c}")
        return f
    def wi(j):
        def f():
            e(f"s_add_u32 s25, s23, {slot*SLOT + 3584*j}")
            e(f"s_add_u32 s26, s21, {(64*c + 16*j)*3584}")
            e("s_mov_b32 m0, s25")
            e("s_mov_b32 exec_hi, 0x00ffffff")
            g.vm(f"buffer_load_dwordx4 v{VW1S}, {srd(S_W1)}, s26 offen lds", f"c{c}")
            e("s_mov_b32 exec_hi, -1")
        return f
    for j in range(4): items.append(wi(j))
    for j in range(4): items.append(xi(j))
    return items

def w2_issue_items(s):
    grp = WG_[s % 7]
    items = []
    def it(jj):
        def f():
            e(f"s_add_u32 s25, s22, {grp + 1024*jj}")
            e(f"s_add_u32 s26, s30, {s*32*1024 + (0x4000 if jj >= 2 else 0)}")
            e("s_mov_b32 m0, s25")
            e("s_nop 0")
            g.vm(f"buffer_load_dwordx4 v{VW2E + (jj&1)}, {srd(S_W2)}, s26 offen lds", f"w2_{s}")
        return f
    return [it(jj) for jj in range(4)]

ACC1 = 20
XF = [80, 116]
WF = [88, 124]
SSM = 160
def g1_reads(s):
    c, kk = s // 2, s % 2
    slot = c % NSLOT
    b = s & 1
    items = []
    def addr():
        e(f"v_add_u32 v10, {slot*SLOT}, v{VXR0 + kk}")
        e(f"v_add_u32 v11, {slot*SLOT + kk*7168}, v{VW1R}")
    def xr(tt):
        return lambda: g.ds(f"ds_read_b128 v[{XF[b]+4*tt}:{XF[b]+4*tt+3}], v10 offset:{2048*tt}", f"x{s}")
    def wr(i, hh):
        return lambda: g.ds(f"ds_read_b64_tr_b16 v[{WF[b]+4*i+2*hh}:{WF[b]+4*i+2*hh+1}], v11 offset:{hh*1792+32*i}", f"w{s}_{i}")
    first = xr(0)
    items.append(lambda: (addr(), first()))
    items.append(xr(1))
    for i in range(7):
        for hh in range(2):
            items.append(wr(i, hh))
    return items
def g1_mfmas(s):
    b = s & 1
    items = []
    def mf(i, tt):
        def f():
            g.wds(f"x{s}", f"w{s}_{i}")
            a = ACC1 + (tt * 7 + i) * 4
            c_ = f"v[{a}:{a+3}]" if s > 0 else "0"
            e(f"v_mfma_f32_16x16x32_bf16 v[{a}:{a+3}], v[{WF[b]+4*i}:{WF[b]+4*i+3}], v[{XF[b]+4*tt}:{XF[b]+4*tt+3}], {c_}")
        return f
    for i in range(7):
        for tt in range(2):
            items.append(mf(i, tt))
    return items

def flag_store(saddr_expr_lines, sreg, tag):
    e(saddr_expr_lines)
    e("v_mov_b32 v252, s88")
    e("v_mov_b32 v253, s89")
    e("v_mov_b32 v251, 0")
    e("s_mov_b64 exec, 1")
    g.vm(f"buffer_store_dwordx2 v[252:253], v251, {srd(S_WS)}, {sreg} offen sc1", tag)
    e("s_mov_b64 exec, -1")

def poll_issue(sreg, nlanes, tag):
    e("v_lshlrev_b32 v250, 3, v1")
    if nlanes < 64:
        e(f"v_and_b32 v250, {nlanes*8-1}, v250")
    g.vm(f"buffer_load_dwordx2 v[246:247], v250, {srd(S_WS)}, {sreg} offen sc1", tag)
def poll_check(sreg, tag):
    lab = g.newlab("L_poll"); done = g.newlab("L_pdone")
    g.wvm(tag)
    e("v_cmp_ne_u64 vcc, s[88:89], v[246:247]")
    e("s_mov_b32 s90, 0")
    e(f"s_cbranch_vccz {done}")
    g.lab(lab)
    e("s_sleep 2")
    e(f"buffer_load_dwordx2 v[246:247], v250, {srd(S_WS)}, {sreg} offen sc1")
    e("s_waitcnt vmcnt(0)")
    e("v_cmp_ne_u64 vcc, s[88:89], v[246:247]")
    e("s_add_u32 s90, s90, 1")
    e("s_cmp_lt_u32 s90, 0x4000")
    e(f"s_cbranch_scc0 {done}")
    e(f"s_cbranch_vccnz {lab}")
    g.lab(done)

def gemm1():
    g.c("---- GEMM1")
    g.wvm("c0")
    e("s_barrier")
    e(f"v_mov_b32 v10, {L_NONCE}")
    g.ds("ds_read_b64 v[12:13], v10", "nonce")
    for it in g1_reads(0): it()
    g.wds("nonce")
    e("v_readfirstlane_b32 s88, v12")
    e("v_readfirstlane_b32 s89, v13")
    for s in range(16):
        c = s // 2
        side = []
        dma = []
        if s % 2 == 1 and c + 1 < 8:
            if c + 1 == 4:
                g.wvm("c4", "kvst", "gst")
            else:
                g.wvm(f"c{c+1}")
            e("s_barrier")
            if c + 1 == 4:
                lab = g.newlab("L_kvsig")
                e("s_cmp_lg_u32 s3, 0")
                e(f"s_cbranch_scc1 {lab}")
                e(f"s_lshl_b32 s91, s4, 8")
                e(f"s_lshl_b32 s92, s5, 3")
                e(f"s_add_u32 s91, s91, s92")
                e(f"s_add_u32 s91, s91, {MB_KV}")
                e("v_mov_b32 v252, s88")
                e("v_mov_b32 v253, s89")
                e("v_mov_b32 v251, 0")
                e("s_mov_b64 exec, 1")
                e(f"buffer_store_dwordx2 v[252:253], v251, {srd(S_WS)}, s91 offen sc1")
                e("s_mov_b64 exec, -1")
                g.lab(lab)
            if 1 <= c <= 3: dma = g1_issue_items(c + 4)
            elif c == 4: dma = w2_issue_items(0)
            elif c == 5: dma = w2_issue_items(1) + w2_issue_items(2)
            elif c == 6: dma = w2_issue_items(3) + w2_issue_items(4)
        if s == 12:
            e(f"s_lshl_b32 s93, s4, 8")
            e(f"s_add_u32 s93, s93, {MB_KV}")
            poll_issue("s93", 32, "pollkv")
        reads = g1_reads(s + 1) if s + 1 < 16 else []
        mf = g1_mfmas(s)
        for j, m in enumerate(mf):
            m()
            for _ in range(2 if j < 2 else 1):
                if reads: reads.pop(0)()
            if dma and j % 2 == 1: dma.pop(0)()
        for r_ in reads: r_()
        for d_ in dma: d_()

def silu_tile(tt, i, dst):
    a = ACC1 + (tt * 7 + i) * 4
    e(f"""
    v_pk_mul_f32 v[80:81], v[{a}:{a+1}], s[12:13]
    v_pk_mul_f32 v[82:83], v[{a+2}:{a+3}], s[12:13]
    v_exp_f32 v80, v80
    v_exp_f32 v81, v81
    v_exp_f32 v82, v82
    v_exp_f32 v83, v83
    v_pk_add_f32 v[80:81], v[80:81], 1.0 op_sel_hi:[1,0]
    v_pk_add_f32 v[82:83], v[82:83], 1.0 op_sel_hi:[1,0]
    v_rcp_f32 v80, v80
    v_rcp_f32 v81, v81
    v_rcp_f32 v82, v82
    v_rcp_f32 v83, v83
    v_pk_mul_f32 v[80:81], v[80:81], v[{a}:{a+1}]
    v_pk_mul_f32 v[82:83], v[82:83], v[{a+2}:{a+3}]
    v_cvt_pk_bf16_f32 v{dst}, v80, v81
    v_cvt_pk_bf16_f32 v{dst+1}, v82, v83
    """)
def round_tile(tt, i):
    a = ACC1 + (tt * 7 + i) * 4
    e(f"""
    v_cvt_pk_bf16_f32 v84, v{a}, v{a+1}
    v_cvt_pk_bf16_f32 v85, v{a+2}, v{a+3}
    v_lshlrev_b32 v{a}, 16, v84
    v_and_b32 v{a+1}, 0xffff0000, v84
    v_lshlrev_b32 v{a+2}, 16, v85
    v_and_b32 v{a+3}, 0xffff0000, v85
    """)

HP = 180
def g1_epilogue():
    g.c("---- GEMM1 epilogue")
    poll_check("s93", "pollkv")
    e("s_barrier")
    e(f"""
    s_mov_b32 s12, 0xbfb8aa3b
    s_mov_b32 s13, 0xbfb8aa3b
    v_and_b32 v86, 1, v4
    v_lshrrev_b32 v87, 1, v4
    v_lshlrev_b32 v87, 8, v87
    v_lshl_add_u32 v87, v3, 4, v87
    v_lshl_add_u32 v88, v86, 9, v87
    v_mul_u32_u24 v86, 57344, v86
    v_add_u32 v89, v86, v87
    s_lshl_b32 s14, s6, 3
    s_lshl_b32 s15, s3, 1
    s_add_u32 s14, s14, s15
    s_mul_i32 s14, s14, 57344
    s_mul_i32 s15, s7, 3584
    s_add_u32 s14, s14, s15
    s_add_u32 s14, s14, {WS_HF}
    s_add_u32 s15, s14, 57344
    s_lshr_b32 s32, s3, 1             ; ch
    s_and_b32 s33, s3, 1
    s_lshl_b32 s34, s10, 1
    s_add_u32 s34, s34, s32           ; d
    s_lshl_b32 s35, s34, 12           ; d*4096
    s_lshl_b32 s36, s33, 11           ; half*2048
    s_add_u32 s37, s35, s36
    s_add_u32 s38, s37, {WS_KVR}
    """)
    g.vm(f"buffer_load_dwordx4 v[208:211], v{VL16}, {srd(S_WS)}, s38 offen sc1", "ur")
    g.vm(f"buffer_load_dwordx4 v[212:215], v{VL16}, {srd(S_WS)}, s38 offen offset:1024 sc1", "ur")
    dma = w2_issue_items(5) + w2_issue_items(6)
    order = [(0, 0), (0, 1), (0, 2), (0, 3), (0, 4), (0, 5), (1, 0), (1, 1), (1, 2), (1, 3), (1, 4), (1, 5), (0, 6), (1, 6)]
    for n, (tt, i) in enumerate(order):
        dst = HP + 4 * (n // 2) + 2 * (n & 1)
        if ROUND_H: round_tile(tt, i)
        silu_tile(tt, i, dst)
        if n & 1:
            b = HP + 4 * (n // 2)
            e("s_nop 0")
            e(f"v_permlane16_swap_b32 v{b}, v{b+2}")
            e(f"v_permlane16_swap_b32 v{b+1}, v{b+3}")
            if n < 12:
                g.vm(f"buffer_store_dwordx4 v[{b}:{b+3}], v88, {srd(S_WS)}, s{14+tt} offen offset:{1024*((n//2)%3)} sc1", "hst")
            else:
                g.vm(f"buffer_store_dwordx4 v[{b}:{b+3}], v89, {srd(S_WS)}, s14 offen offset:3072 sc1", "hst")
    for d_ in dma: d_()

ROUND_H = True
CACC = 20
CA = [60, 124]
CB = [92, 156]
def ssm_loads():
    e(f"""
    s_lshr_b32 s32, s3, 1             ; ch
    s_and_b32 s33, s3, 1
    s_lshl_b32 s34, s10, 1
    s_add_u32 s34, s34, s32           ; d
    s_lshl_b32 s35, s34, 12           ; d*4096
    s_lshl_b32 s36, s33, 11           ; half*2048
    s_add_u32 s37, s35, s36
    v_mov_b32 v5, 0
    s_lshl_b32 s38, s10, 2
    s_load_dword s39, s[40:41], s38
    """)
    g.vm(f"buffer_load_dwordx4 v[{SSM}:{SSM+3}], v{VL16}, {srd(S_SSMK)}, s37 offen", "ssm")
    g.vm(f"buffer_load_dwordx2 v[{SSM+4}:{SSM+5}], v{VL16}, {srd(S_SSMK)}, s37 offen offset:16", "ssm")
    g.vm(f"buffer_load_dwordx4 v[{SSM+6}:{SSM+9}], v{VL16}, {srd(S_SSMK)}, s37 offen offset:1024", "ssm")
    g.vm(f"buffer_load_dwordx2 v[{SSM+10}:{SSM+11}], v{VL16}, {srd(S_SSMK)}, s37 offen offset:1040", "ssm")
    g.vm(f"buffer_load_dwordx2 v[{SSM+16}:{SSM+17}], v5, {srd(S_SSMK)}, s35 offen", "ssm")
    g.wds_all()

def conv_prep():
    g.c("---- conv prep: toeplitz copies + ur")
    g.wvm("ssm")
    Z = SSM + 12
    e(f"""
    v_mov_b32 v{Z}, 0
    v_mov_b32 v{Z+1}, 0
    v_mov_b32 v{Z+2}, 0
    v_mov_b32 v{Z+3}, 0
    v_and_b32 v11, 1, v1
    v_cmp_eq_u32 vcc, 1, v11
    s_mul_i32 s16, s32, {4*TP}
    s_add_u32 s16, s16, {L_TOEP}
    v_cndmask_b32 v{Z+4}, 0, v{Z+4}, vcc
    v_cndmask_b32 v{Z+5}, 0, v{Z+5}, vcc
    s_add_u32 s17, s16, s36
    v_add_u32 v13, s17, v{VL16}
    v_lshl_add_u32 v14, v11, 4, s16
    """)
    def copies(d, vaddr, off, t):
        g.ds(f"ds_write_b128 {vaddr}, v[{d}:{d+3}] offset:{off}")
        e(f"""
        v_alignbyte_b32 v{t}, v{d+1}, v{d}, 2
        v_alignbyte_b32 v{t+1}, v{d+2}, v{d+1}, 2
        v_alignbyte_b32 v{t+2}, v{d+3}, v{d+2}, 2
        v_alignbyte_b32 v{t+3}, v{d+4}, v{d+3}, 2
        """)
        g.ds(f"ds_write_b128 {vaddr}, v[{t}:{t+3}] offset:{off+TP}")
        e(f"""
        v_mov_b32 v{t+4}, v{d+1}
        v_mov_b32 v{t+5}, v{d+2}
        v_mov_b32 v{t+6}, v{d+3}
        v_mov_b32 v{t+7}, v{d+4}
        """)
        g.ds(f"ds_write_b128 {vaddr}, v[{t+4}:{t+7}] offset:{off+2*TP}")
        e(f"""
        v_mov_b32 v{t+8}, v{t+1}
        v_mov_b32 v{t+9}, v{t+2}
        v_mov_b32 v{t+10}, v{t+3}
        v_alignbyte_b32 v{t+11}, v{d+5}, v{d+4}, 2
        """)
        g.ds(f"ds_write_b128 {vaddr}, v[{t+8}:{t+11}] offset:{off+3*TP}")
    copies(SSM, "v13", 32, 20)
    copies(SSM + 6, "v13", 32 + 1024, 32)
    copies(Z, "v14", 0, 44)
    e(f"""
    s_mul_i32 s18, s32, {URP}
    s_add_u32 s18, s18, {L_UR}
    s_add_u32 s19, s18, s36
    v_add_u32 v13, s19, v{VL16}
    v_add_u32 v14, s18, v{VL16}
    """)
    g.ds(f"ds_write_b128 v14, v[{Z}:{Z+3}] offset:4096")
    g.wvm("ur")
    g.ds("ds_write_b128 v13, v[208:211]")
    g.ds("ds_write_b128 v13, v[212:215] offset:1024")
    e(f"""
    v_add_u32 v10, 1, v3
    v_and_b32 v11, 3, v10
    v_sub_u32 v10, v10, v11
    v_mul_u32_u24 v11, {TP}, v11
    v_lshl_add_u32 v13, v10, 1, v11
    v_lshl_add_u32 v13, v4, 4, v13
    s_lshl_b32 s19, s33, 8
    s_add_u32 s24, s16, s19
    v_add_u32 v13, s24, v13
    v_lshlrev_b32 v10, 5, v3
    v_lshlrev_b32 v11, 4, v4
    v_sub_u32 v14, v11, v10
    s_add_u32 s24, s18, s19
    s_add_u32 s24, s24, 480
    v_add_u32 v14, s24, v14
    """)
    g.wds_all()
    e("s_barrier")

def conv_reads(b0):
    b = b0 & 1
    items = []
    def ar(b1, hh):
        return lambda: g.ds(f"ds_read_b64 v[{CA[b]+4*b1+2*hh}:{CA[b]+4*b1+2*hh+1}], v13 offset:{64*(8*b1+b0)+8*hh}", f"ca{b0}_{b1}")
    def br(x):
        return lambda: g.ds(f"ds_read_b128 v[{CB[b]+4*x}:{CB[b]+4*x+3}], v14 offset:{64*b0+512*(7-x)}", f"cb{b0}_{x}")
    for n in range(8):
        items += [ar(n, 0), ar(n, 1), br(n)]
    return items
def conv_mfmas(b0):
    b = b0 & 1
    pairs = [(b1, x) for b1 in range(8) for x in range(8 - b1)]
    pairs.sort(key=lambda p: (max(p), p[0] + p[1]))
    seen = set()
    items = []
    def mf(b1, x, first):
        def f():
            g.wds(f"ca{b0}_{b1}", f"cb{b0}_{x}")
            a = CACC + 4 * (x + b1)
            c_ = "0" if first else f"v[{a}:{a+3}]"
            e(f"v_mfma_f32_16x16x32_bf16 v[{a}:{a+3}], v[{CA[b]+4*b1}:{CA[b]+4*b1+3}], v[{CB[b]+4*x}:{CB[b]+4*x+3}], {c_}")
        return f
    for (b1, x) in pairs:
        first = (b0 == 0) and ((b1 + x) not in seen)
        seen.add(b1 + x)
        items.append(mf(b1, x, first))
    return items

def h_load_items():
    items = []
    def ld(s, tau):
        def f():
            a = (s * 4 + tau) * 4
            if s > 0 and s % 4 == 0:
                e(f"s_add_u32 s{26+tau}, s{26+tau}, 4096")
            g.vm(f"buffer_load_dwordx4 a[{a}:{a+3}], v{VL16}, {srd(S_WS)}, s{26+tau} offen offset:{1024*(s&3)} sc1", f"h{s}")
        return f
    for s in range(14):
        for tau in range(4):
            items.append(ld(s, tau))
    return items

def conv():
    g.c("---- conv main")
    for it in conv_reads(0): it()
    for b0 in range(4):
        reads = conv_reads(b0 + 1) if b0 < 3 else []
        mf = conv_mfmas(b0)
        if b0 == 1:
            g.wvm("hst")
            flag_store(f"""
            s_lshl_b32 s91, s6, 1
            s_add_u32 s91, s91, s32
            s_lshl_b32 s91, s91, 8
            s_lshl_b32 s92, s7, 4
            s_add_u32 s91, s91, s92
            s_lshl_b32 s92, s33, 3
            s_add_u32 s91, s91, s92
            s_add_u32 s91, s91, {MB_H}
            """, "s91", "hflag")
        if b0 == 3:
            e(f"s_lshl_b32 s93, s8, 8")
            e(f"s_add_u32 s93, s93, {MB_H}")
            poll_issue("s93", 32, "pollh")
        for j, m in enumerate(mf):
            m()
            if j % 3 != 2 and reads: reads.pop(0)()
        for r_ in reads: r_()
    stamp(6)
    poll_check("s93", "pollh")
    stamp(7)
    e(f"""
    s_mul_i32 s24, s3, {14*1024}
    s_add_u32 s24, s24, {WS_HF}
    """)
    for tau in range(4):
        e(f"""
        s_add_u32 s25, s3, {tau}
        s_and_b32 s25, s25, 3
        s_lshl_b32 s31, s8, 2
        s_add_u32 s25, s25, s31
        s_mul_i32 s25, s25, 57344
        s_add_u32 s{26+tau}, s25, s24
        """)
    hl = h_load_items()
    for _ in range(16): hl.pop(0)()
    e("s_barrier")
    e(f"""
    s_lshl_b32 s24, s3, 12
    s_add_u32 s24, s24, {L_CRED}
    v_add_u32 v11, s24, v{VL16}
    s_xor_b32 s24, s3, 1
    s_lshl_b32 s24, s24, 12
    s_add_u32 s24, s24, {L_CRED}
    v_add_u32 v12, s24, v{VL16}
    s_cmp_eq_u32 s33, 0
    s_cbranch_scc1 L_cr_e0
    """)
    for n in range(4):
        e(f"ds_write_b128 v11, v[{CACC+4*n}:{CACC+4*n+3}] offset:{1024*n}")
    e("s_waitcnt lgkmcnt(0)")
    for r in range(16):
        e(f"v_mov_b32 v{CACC+r}, v{CACC+16+r}")
    e("s_branch L_cr_join")
    g.lab("L_cr_e0")
    for n in range(4):
        e(f"ds_write_b128 v11, v[{CACC+16+4*n}:{CACC+16+4*n+3}] offset:{1024*n}")
    g.lab("L_cr_join")
    for _ in range(8): hl.pop(0)()
    g.wds_all()
    e("s_barrier")
    for n in range(4):
        g.ds(f"ds_read_b128 v[{60+4*n}:{63+4*n}], v12 offset:{1024*n}", "cred")
    e(f"""
    v_lshlrev_b32 v10, 5, v3
    v_lshl_add_u32 v10, v4, 3, v10    ; 2*(16n+4q)
    s_lshl_b32 s24, s33, 11           ; e*4*512
    s_sub_u32 s24, s18, s24
    s_add_u32 s24, s24, {4088 - 1536}
    v_sub_u32 v11, s24, v10
    """)
    for n in range(4):
        g.ds(f"ds_read_b64 v[{100+2*n}:{101+2*n}], v11 offset:{1536 - 512*n}", "ckv")
    for _ in range(8): hl.pop(0)()
    e(f"""
    s_lshl_b32 s24, s32, 4
    s_lshr_b32 s24, s39, s24
    s_lshl_b32 s24, s24, 16           ; D[d] as f32
    s_lshl_b32 s25, s3, 11
    s_add_u32 s25, s25, {L_CRED + 16384}
    v_add_u32 v11, s25, v10
    v_add_u32 v13, s25, v{VL16}
    """)
    g.wds("cred", "ckv")
    for n in range(4):
        a = CACC + 4 * n
        e(f"""
        v_pk_add_f32 v[{a}:{a+1}], v[{a}:{a+1}], v[{60+4*n}:{61+4*n}]
        v_pk_add_f32 v[{a+2}:{a+3}], v[{a+2}:{a+3}], v[{62+4*n}:{63+4*n}]
        v_and_b32 v80, 0xffff0000, v{101+2*n}
        v_lshlrev_b32 v81, 16, v{101+2*n}
        v_and_b32 v82, 0xffff0000, v{100+2*n}
        v_lshlrev_b32 v83, 16, v{100+2*n}
        v_fma_f32 v{a}, v80, s24, v{a}
        v_fma_f32 v{a+1}, v81, s24, v{a+1}
        v_fma_f32 v{a+2}, v82, s24, v{a+2}
        v_fma_f32 v{a+3}, v83, s24, v{a+3}
        v_cvt_pk_bf16_f32 v{84+2*n}, v{a}, v{a+1}
        v_cvt_pk_bf16_f32 v{85+2*n}, v{a+2}, v{a+3}
        """)
        g.ds(f"ds_write_b64 v11, v[{84+2*n}:{85+2*n}] offset:{512*n}", "cw")
    g.wds("cw")
    g.ds("ds_read_b128 v[92:95], v13", "cr2")
    g.ds("ds_read_b128 v[96:99], v13 offset:1024", "cr2")
    e(f"s_add_u32 s24, s37, {WS_Y2}")
    g.wds("cr2")
    g.vm(f"buffer_store_dwordx4 v[92:95], v{VL16}, {srd(S_WS)}, s24 offen sc1", "yst")
    g.vm(f"buffer_store_dwordx4 v[96:99], v{VL16}, {srd(S_WS)}, s24 offen offset:1024 sc1", "yst")
    return hl

ACC2 = 20
W2F = [100, 116]
VW2R = 200
def g2_reads(s):
    b = s & 1
    grp = WG_[s % 7]
    rng = 0 if grp < 65536 else (1 if grp < 131072 else 2)
    off = grp - rng * 65536
    items = []
    def rd(i, hh):
        return lambda: g.ds(f"ds_read_b64_tr_b16 v[{W2F[b]+4*i+2*hh}:{W2F[b]+4*i+2*hh+1}], v{VW2R+4*rng+i} offset:{off+hh*512}", f"v{s}_{i}")
    for i in range(4):
        for hh in range(2): items.append(rd(i, hh))
    return items
def g2_mfmas(s):
    b = s & 1
    items = []
    def mf(i, tau):
        def f():
            g.wds(f"v{s}_{i}")
            g.wvm(f"h{s}")
            a = ACC2 + (i * 4 + tau) * 4
            h = (s * 4 + tau) * 4
            c_ = f"v[{a}:{a+3}]" if s > 0 else "0"
            e(f"v_mfma_f32_16x16x32_bf16 v[{a}:{a+3}], v[{W2F[b]+4*i}:{W2F[b]+4*i+3}], a[{h}:{h+3}], {c_}")
        return f
    for i in range(4):
        for tau in range(4): items.append(mf(i, tau))
    return items

def gemm2(hl):
    g.c("---- GEMM2")
    e(f"""
    v_bfe_u32 v10, v1, 2, 2           ; r
    v_lshrrev_b32 v11, 1, v10
    v_and_b32 v12, 1, v4
    v_lshl_add_u32 v11, v12, 1, v11   ; s(k)
    v_lshl_add_u32 v10, v4, 3, v10    ; 8q + r
    v_lshlrev_b32 v10, 7, v10
    v_and_b32 v12, 3, v1
    v_lshl_add_u32 v10, v12, 3, v10
    v_add_u32 v10, s22, v10
    """)
    for i in range(4):
        e(f"v_xor_b32 v12, {i}, v11")
        e(f"v_lshl_add_u32 v{VW2R+i}, v12, 5, v10")
        e(f"v_add_u32 v{VW2R+4+i}, 0x10000, v{VW2R+i}")
        e(f"v_add_u32 v{VW2R+8+i}, 0x20000, v{VW2R+i}")
    for it in hl: it()
    stamp(8)
    g.wvm("w2_0")
    for it in g2_reads(0): it()
    for s in range(14):
        side = []
        if s + 1 < 14:
            g.wvm(f"w2_{s+1}")
            reads = g2_reads(s + 1)
        else:
            reads = []
        mf = g2_mfmas(s)
        dma = []
        if s == 2:
            g.wvm("yst")
            flag_store(f"""
            s_lshl_b32 s91, s4, 1
            s_add_u32 s91, s91, s33
            s_lshl_b32 s91, s91, 9
            s_lshl_b32 s92, s5, 4
            s_add_u32 s91, s91, s92
            s_lshl_b32 s92, s32, 3
            s_add_u32 s91, s91, s92
            s_add_u32 s91, s91, {MB_Y}
            """, "s91", "yflag")
        for j, m in enumerate(mf):
            m()
            if j < 8 and reads: reads.pop(0)()
            if j == 3 and s >= 1 and s + 6 < 14:
                dma = w2_issue_items(s + 6)
            if dma and j >= 4 and j % 3 == 1: dma.pop(0)()
        for d_ in dma: d_()
        if s == 9:
            e(f"""
            s_lshl_b32 s93, s9, 1
            s_lshr_b32 s92, s8, 4
            s_add_u32 s93, s93, s92
            s_lshl_b32 s93, s93, 9
            s_add_u32 s93, s93, {MB_Y}
            """)
            poll_issue("s93", 64, "polly")
        if s == 11:
            poll_check("s93", "polly")
            e(f"""
            v_lshrrev_b32 v11, 3, v1
            v_and_b32 v12, 7, v1
            v_lshlrev_b32 v13, 12, v11
            v_lshl_add_u32 v13, v12, 4, v13
            v_lshlrev_b32 v11, 10, v11
            v_lshl_add_u32 v11, v12, 4, v11
            s_lshl_b32 s24, s9, 6
            s_lshl_b32 s25, s3, 4
            s_add_u32 s24, s24, s25           ; d0 = 64cb2 + 16w
            s_lshl_b32 s24, s24, 12
            s_lshl_b32 s25, s8, 7
            s_add_u32 s24, s24, s25
            s_add_u32 s24, s24, {WS_Y2}
            s_add_u32 s25, s24, 32768
            """)
            g.vm(f"buffer_load_dwordx4 v[132:135], v13, {srd(S_WS)}, s24 offen sc1", "yld")
            g.vm(f"buffer_load_dwordx4 v[136:139], v13, {srd(S_WS)}, s25 offen sc1", "yld")
            e(f"""
            s_lshl_b32 s31, s8, 6
            s_lshl_b32 s25, s3, 4
            s_add_u32 s31, s31, s25
            s_lshl_b32 s25, s31, 2
            s_add_u32 s25, s25, {WS_G}
            v_lshlrev_b32 v12, 2, v3
            """)
            g.vm(f"buffer_load_dword v140, v12, {srd(S_WS)}, s25 offen sc1", "gld")
            e(f"""
            s_lshl_b32 s24, s31, 10
            s_lshl_b32 s25, s9, 7
            s_add_u32 s31, s24, s25
            s_lshl_b32 s25, s3, 11
            s_add_u32 s25, s25, {L_QT}
            s_mov_b32 m0, s25
            s_add_u32 s25, s25, 1024
            """)
            g.vm(f"buffer_load_dwordx4 v11, {srd(S_Q)}, s31 offen lds", "qld")
            e("s_add_u32 s24, s31, 8192")
            e("s_mov_b32 m0, s25")
            e("s_nop 0")
            g.vm(f"buffer_load_dwordx4 v11, {srd(S_Q)}, s24 offen lds", "qld")
    stamp(9)
    e("s_nop 4")
    e("s_barrier")
    for tau in range(1, 4):
        e(f"""
        s_add_u32 s24, s3, {tau}
        s_and_b32 s24, s24, 3
        s_mul_i32 s24, s24, 12288
        s_add_u32 s24, s24, {L_RED + (tau-1)*4096}
        v_add_u32 v11, s24, v{VL16}
        """)
        for i in range(4):
            a = ACC2 + (i * 4 + tau) * 4
            g.ds(f"ds_write_b128 v11, v[{a}:{a+3}] offset:{1024*i}")
    e(f"""
    s_lshl_b32 s24, s3, 11
    s_add_u32 s24, s24, {L_YT}
    v_add_u32 v12, s24, v{VL16}
    """)
    g.wvm("yld")
    g.ds("ds_write_b128 v12, v[132:135]")
    g.ds("ds_write_b128 v12, v[136:139] offset:1024")
    e(f"""
    s_mul_i32 s24, s3, 12288
    s_add_u32 s24, s24, {L_RED}
    v_add_u32 v11, s24, v{VL16}
    v_lshlrev_b32 v12, 7, v3
    v_lshl_add_u32 v12, v4, 3, v12
    s_lshl_b32 s24, s3, 11
    s_add_u32 s24, s24, {L_QT}
    v_add_u32 v12, s24, v12
    v_lshrrev_b32 v13, 2, v1          ; 4q4 + r'
    v_lshlrev_b32 v13, 7, v13
    v_and_b32 v14, 3, v1
    v_lshl_add_u32 v13, v14, 3, v13
    s_lshl_b32 s24, s3, 5
    s_add_u32 s24, s24, {L_YT}
    v_add_u32 v13, s24, v13
    """)
    g.wvm("qld", "gld")
    g.wds_all()
    e("s_barrier")
    for i in range(4):
        g.ds(f"ds_read_b64 v[{192+2*i}:{193+2*i}], v12 offset:{32*i}", f"eq{i}")
        g.ds(f"ds_read_b64_tr_b16 v[{212+2*i}:{213+2*i}], v13 offset:{2048*i}", f"eq{i}")
        for tau in range(3):
            n = tau * 4 + i
            g.ds(f"ds_read_b128 v[{144+4*n}:{147+4*n}], v11 offset:{1024*n}", f"ep{i}")
    e("""
    v_sub_f32 v141, 1.0, v140
    v_cvt_pk_bf16_f32 v141, v141, v141
    v_lshlrev_b32 v141, 16, v141      ; bf16(1-g)
    v_and_b32 v14, 1, v4
    v_lshrrev_b32 v15, 1, v4
    v_lshlrev_b32 v15, 4, v15
    v_lshl_add_u32 v15, v14, 5, v15
    v_lshl_add_u32 v15, v3, 10, v15
    """)
    for i in range(4):
        a = ACC2 + (i * 4) * 4
        g.wds(f"eq{i}")
        qd, yd = 192 + 2 * i, 212 + 2 * i
        e(f"""
        v_lshlrev_b32 v100, 16, v{qd}
        v_and_b32 v101, 0xffff0000, v{qd}
        v_lshlrev_b32 v102, 16, v{qd+1}
        v_and_b32 v103, 0xffff0000, v{qd+1}
        v_lshlrev_b32 v104, 16, v{yd}
        v_and_b32 v105, 0xffff0000, v{yd}
        v_lshlrev_b32 v106, 16, v{yd+1}
        v_and_b32 v107, 0xffff0000, v{yd+1}
        v_pk_mul_f32 v[100:101], v[100:101], v[104:105]
        v_pk_mul_f32 v[102:103], v[102:103], v[106:107]
        v_cvt_pk_bf16_f32 v104, v100, v101
        v_cvt_pk_bf16_f32 v105, v102, v103
        v_lshlrev_b32 v100, 16, v104
        v_and_b32 v101, 0xffff0000, v104
        v_lshlrev_b32 v102, 16, v105
        v_and_b32 v103, 0xffff0000, v105
        v_pk_mul_f32 v[100:101], v[100:101], v[140:141] op_sel_hi:[1,0]
        v_pk_mul_f32 v[102:103], v[102:103], v[140:141] op_sel_hi:[1,0]
        v_cvt_pk_bf16_f32 v104, v100, v101
        v_cvt_pk_bf16_f32 v105, v102, v103
        v_lshlrev_b32 v100, 16, v104
        v_and_b32 v101, 0xffff0000, v104
        v_lshlrev_b32 v102, 16, v105
        v_and_b32 v103, 0xffff0000, v105
        """)
        g.wds(f"ep{i}")
        for tau in range(3):
            p = 144 + (tau * 4 + i) * 4
            e(f"v_pk_add_f32 v[{a}:{a+1}], v[{a}:{a+1}], v[{p}:{p+1}]")
            e(f"v_pk_add_f32 v[{a+2}:{a+3}], v[{a+2}:{a+3}], v[{p+2}:{p+3}]")
        e(f"""
        v_cvt_pk_bf16_f32 v104, v{a}, v{a+1}
        v_cvt_pk_bf16_f32 v105, v{a+2}, v{a+3}
        v_lshlrev_b32 v{a}, 16, v104
        v_and_b32 v{a+1}, 0xffff0000, v104
        v_lshlrev_b32 v{a+2}, 16, v105
        v_and_b32 v{a+3}, 0xffff0000, v105
        v_pk_mul_f32 v[{a}:{a+1}], v[{a}:{a+1}], v[140:141] op_sel:[0,1] op_sel_hi:[1,1]
        v_pk_mul_f32 v[{a+2}:{a+3}], v[{a+2}:{a+3}], v[140:141] op_sel:[0,1] op_sel_hi:[1,1]
        v_cvt_pk_bf16_f32 v104, v{a}, v{a+1}
        v_cvt_pk_bf16_f32 v105, v{a+2}, v{a+3}
        v_lshlrev_b32 v{a}, 16, v104
        v_and_b32 v{a+1}, 0xffff0000, v104
        v_lshlrev_b32 v{a+2}, 16, v105
        v_and_b32 v{a+3}, 0xffff0000, v105
        v_pk_add_f32 v[100:101], v[100:101], v[{a}:{a+1}]
        v_pk_add_f32 v[102:103], v[102:103], v[{a+2}:{a+3}]
        v_cvt_pk_bf16_f32 v{108+2*i}, v100, v101
        v_cvt_pk_bf16_f32 v{109+2*i}, v102, v103
        """)
        if i & 1:
            b = 108 + 2 * (i - 1)
            e("s_nop 1")
            e(f"v_permlane16_swap_b32 v{b}, v{b+2}")
            e(f"v_permlane16_swap_b32 v{b+1}, v{b+3}")
            g.vm(f"buffer_store_dwordx4 v[{b}:{b+3}], v15, {srd(S_OUT)}, s31 offen offset:{32*(i-1)}")

prologue()
p0_addr()
g1_setup()
e("s_waitcnt lgkmcnt(0)")
stamp(0)
e("s_cmp_lg_u32 s3, 0")
e("s_cbranch_scc1 L_nononce")
e("""
v_mov_b32 v228, s42
v_mov_b32 v229, s43
v_mov_b32 v230, 0
v_mov_b32 v231, 0
v_mov_b32 v232, 0
s_mov_b64 exec, 1
""")
e(f"buffer_atomic_cmpswap_x2 v[228:231], v232, {srd(S_DBG)}, 0 offen sc0 sc1")
e("s_mov_b64 exec, -1")
g.lab("L_nononce")
p0_loads()
for c in range(NSLOT):
    for it in g1_issue_items(c): it()
g1_setup2()
p0_compute()
stamp(1)
e("s_cmp_lg_u32 s3, 0")
e("s_cbranch_scc1 L_nononce2")
e(f"""
v_cmp_eq_u64 vcc, 0, v[228:229]
v_mov_b32 v230, s42
v_mov_b32 v231, s43
v_mov_b32 v232, {L_NONCE}
v_cndmask_b32 v228, v228, v230, vcc
v_cndmask_b32 v229, v229, v231, vcc
s_mov_b64 exec, 1
ds_write_b64 v232, v[228:229]
s_mov_b64 exec, -1
""")
g.lab("L_nononce2")
ssm_loads()
gemm1()
stamp(2)
g1_epilogue()
stamp(3)
conv_prep()
stamp(5)
hl = conv()
gemm2(hl)
if STAMPS:
    g.wvm_all()
    stamp(14)
g.lab("L_end")
e("s_endpgm")
g.lab("L_codeend")

body = "\n".join(g.L)
out = HEADER + f"""; Override launch geometry by editing the next line (default: block=256,
; grid=ceil(out_elems/256), lds=0). Harness parses it; keep it on one line.
; @launch grid=(256,1,1) block=(256,1,1) lds={LDS_TOTAL}
.amdgcn_target "amdgcn-amd-amdhsa--gfx950"
.text
.globl {KNAME}
.p2align 8
.type {KNAME},@function
{KNAME}:
{body}
.section .rodata,"a"
.p2align 6
.amdhsa_kernel {KNAME}
  .amdhsa_next_free_vgpr 512
  .amdhsa_next_free_sgpr 102
  .amdhsa_accum_offset 256
  .amdhsa_group_segment_fixed_size 0
  .amdhsa_kernarg_size 104
  .amdhsa_user_sgpr_count 2
  .amdhsa_user_sgpr_kernarg_segment_ptr 1
  .amdhsa_system_sgpr_workgroup_id_x 1
.end_amdhsa_kernel
"""
dst = sys.argv[1] if len(sys.argv) > 1 else "gated_mix__ssm_conv_h3__dense_activation_silu__prompt.s"
open(dst, "w").write(out)
print("wrote", dst, len(out), "bytes", len(g.L), "lines")
```

```python
import sys, os

KNAME = "gated_mix__ssm_conv_h3__dense_activation_silu__prompt_kernel"
HEADER = open("gated_mix__ssm_conv_h3__dense_activation_silu__prompt.s.ref").read().split("; Override launch")[0]
STAMPS = bool(os.environ.get('STAMPS'))
def ENV(n, d): return int(os.environ.get(n, d))

WS_KVR = 0
WS_HF  = 2 << 20
WS_Y2  = 10 << 20
WS_G   = 12 << 20
WS_MB  = (12 << 20) + 65536
MB_KV = WS_MB
MB_H  = WS_MB + 4096
MB_Y  = WS_MB + 16384
WS_STAMP = 13 << 20
WS_SIZE = 14 << 20

SLOT = 32768
NSLOT = 5
WG_ = [147456, 0, 16384, 32768, 49152, 65536, 81920]
L_TOEP = 98304
TP = 4160
L_UR = L_TOEP + 2 * 4 * TP
URP = 5120
LDS_TOTAL = 163840
L_CRED = L_TOEP
L_RED = L_TOEP
L_QY = WG_[0]

class G:
    def __init__(self):
        self.L = []
        self.nlab = 0
        self.vmq = []; self.vmdone = 0
        self.dsq = []; self.dsdone = 0
        self.side = []; self.side_every = 0; self.side_cnt = 0; self.in_side = False
    def e(self, s):
        for line in s.strip("\n").split("\n"):
            if line.strip():
                self.L.append("    " + line.strip())
                if self.side_every and not self.in_side and line.strip().startswith("v_"):
                    self.side_cnt += 1
                    if self.side_cnt % self.side_every == 0 and self.side:
                        self.in_side = True
                        self.side.pop(0)()
                        self.in_side = False
    def side_on(self, q, every):
        self.side = q; self.side_every = every; self.side_cnt = 0
    def side_off(self, flush=False):
        self.side_every = 0
        if flush:
            while self.side: self.side.pop(0)()
        self.side = []
    def c(self, s):
        self.L.append("    ; " + s)
    def lab(self, l):
        self.L.append(l + ":")
    def newlab(self, p="L"):
        self.nlab += 1
        return f"{p}_{self.nlab}"
    def vm(self, s, tag=None):
        self.e(s); self.vmq.append(tag)
    def ds(self, s, tag=None):
        self.e(s); self.dsq.append(tag)
    def _need(self, q, done, tags, cap):
        idx = -1
        for t in tags:
            pos = [i for i, x in enumerate(q) if x == t]
            assert pos, f"tag {t} not issued"
            idx = max(idx, pos[-1])
        if idx + 1 <= done: return None, done
        n = len(q) - 1 - idx
        if n > cap: n = cap
        return n, len(q) - n
    def wvm(self, *tags):
        n, self.vmdone = self._need(self.vmq, self.vmdone, tags, 63)
        if n is not None: self.e(f"s_waitcnt vmcnt({n})")
    def wds(self, *tags):
        n, self.dsdone = self._need(self.dsq, self.dsdone, tags, 15)
        if n is not None: self.e(f"s_waitcnt lgkmcnt({n})")
    def wboth(self, vtags, dtags):
        n, self.vmdone = self._need(self.vmq, self.vmdone, vtags, 63) if vtags else (None, self.vmdone)
        m, self.dsdone = self._need(self.dsq, self.dsdone, dtags, 15) if dtags else (None, self.dsdone)
        s = []
        if n is not None: s.append(f"vmcnt({n})")
        if m is not None: s.append(f"lgkmcnt({m})")
        if s: self.e("s_waitcnt " + " ".join(s))
    def wvm_all(self):
        self.e("s_waitcnt vmcnt(0)"); self.vmdone = len(self.vmq)
    def wds_all(self):
        self.e("s_waitcnt lgkmcnt(0)"); self.dsdone = len(self.dsq)

g = G()
e = g.e

S_Q, S_K, S_V, S_SSMK, S_W1, S_W2, S_OUT, S_DBG, S_WS, S_SK, S_GW = [44 + 4 * i for i in range(11)]
def srd(b): return f"s[{b}:{b+3}]"

ACC1 = 20
XF = [76, 84]
WF = [92, 120]
VX = 148
VW1S = 152
VXR = 156
VW1R = 162
STG = 76
SSM = 188
ZR = SSM + 12
VL16 = 206
VW2 = 207
VTD = 211
VW2R = 216
VH = 228
VH8 = 232
VN = 240
CACC = 20
ACC2 = 12

def stamp(i):
    if not STAMPS: return
    e("s_memrealtime s[98:99]")
    e("s_memtime s[100:101]")
    g.wds_all()
    e("v_mov_b32 v254, s98")
    e("v_mov_b32 v255, s100")
    e("s_lshl_b32 s98, s2, 2")
    e("s_add_u32 s98, s98, s3")
    e("s_lshl_b32 s98, s98, 8")
    e(f"s_add_u32 s98, s98, {WS_STAMP + 8*i}")
    e("v_mov_b32 v253, 0")
    e("s_mov_b64 exec, 1")
    g.vm(f"buffer_store_dwordx2 v[254:255], v253, {srd(S_WS)}, s98 offen")
    e("s_mov_b64 exec, -1")

def run_slots(mf, fixed, q=None, cap=2, qstart=0, pace=1):
    last = -10**9
    for j, m in enumerate(mf):
        m()
        fx = fixed.get(j, [])
        for f in fx: f()
        n = len(fx)
        while q and n < cap and j >= qstart and j - last >= pace:
            it = q.pop(0)
            it(); n += 1
            if not getattr(it, "light", False):
                last = j
                if pace > 0: break

def light(f):
    f.light = True
    return f

def place(fixed, items, start, per):
    j = start
    items = list(items)
    while items:
        for _ in range(per):
            if items: fixed.setdefault(j, []).append(items.pop(0))
        j += 1

def prologue():
    e("s_cmp_ge_u32 s2, 256")
    e("s_cbranch_scc1 L_end")
    for (b, off) in ((S_K, 8), (S_V, 16), (S_Q, 0), (S_W1, 56), (S_SK, 24), (S_GW, 72), (S_DBG, 88), (S_WS, 96), (S_SSMK, 32), (S_W2, 64), (S_OUT, 80)):
        e(f"s_load_dwordx2 s[{b}:{b+1}], s[0:1], {off}")
    e("s_load_dwordx2 s[40:41], s[0:1], 40")
    e("s_memrealtime s[42:43]")
    e("""
    v_and_b32 v1, 63, v0          ; lane
    v_lshrrev_b32 v2, 6, v0       ; wave
    s_and_b32 s4, s2, 7           ; xcd
    s_lshr_b32 s5, s2, 3          ; idx
    v_readfirstlane_b32 s3, v2
    """)
    e(f"""
    s_getpc_b64 s[12:13]
L_pc:
    s_lshl_b32 s14, s5, 2
    s_add_u32 s14, s14, s3
    s_lshl_b32 s14, s14, 10
    s_cmp_lt_u32 s14, (L_codeend - L_pc - 1024)
    s_cselect_b32 s14, s14, 0
    v_lshlrev_b32 v{VL16}, 4, v1
    v_add_u32 v5, s14, v{VL16}
    """)
    g.vm("global_load_dwordx4 v[248:251], v5, s[12:13]", "codepf")
    for (b, n) in ((S_Q, 2 << 20), (S_K, 2 << 20), (S_V, 2 << 20), (S_SK, 4096), (S_SSMK, 2 << 20), (S_W1, 1835008), (S_W2, 1835008), (S_GW, 1024), (S_OUT, 2 << 20), (S_DBG, 256), (S_WS, WS_SIZE)):
        e(f"s_mov_b32 s{b+2}, {n}")
        e(f"s_mov_b32 s{b+3}, 0x00020000")
    e("""
    s_lshr_b32 s6, s4, 1
    s_lshl_b32 s6, s6, 2
    s_and_b32 s7, s5, 3
    s_add_u32 s6, s6, s7
    s_and_b32 s7, s4, 1
    s_lshl_b32 s7, s7, 3
    s_lshr_b32 s8, s5, 2
    s_add_u32 s7, s7, s8
    s_lshl_b32 s8, s4, 2
    s_and_b32 s9, s5, 3
    s_add_u32 s8, s8, s9
    s_lshr_b32 s9, s5, 2
    s_lshl_b32 s10, s4, 5
    s_add_u32 s10, s10, s5
    v_and_b32 v3, 15, v1          ; l&15
    v_lshrrev_b32 v4, 4, v1       ; q = l>>4
    s_lshl_b32 s22, s3, 12        ; wave*4096
    s_lshr_b32 s32, s3, 1             ; ch
    s_and_b32 s33, s3, 1
    s_lshl_b32 s34, s10, 1
    s_add_u32 s34, s34, s32           ; d
    s_lshl_b32 s35, s34, 12           ; d*4096
    s_lshl_b32 s36, s33, 11           ; half*2048
    s_add_u32 s37, s35, s36
    """)

def p0_addr():
    e(f"""
    v_and_b32 v10, 31, v1             ; p
    v_lshrrev_b32 v11, 5, v1
    v_lshl_add_u32 v11, v2, 1, v11    ; rg = 2w + (l>>5)
    s_lshl_b32 s12, s5, 6
    v_lshl_add_u32 v11, v11, 3, s12
    s_add_u32 s11, s4, s5
    s_and_b32 s11, s11, 7
    s_lshl_b32 s13, s11, 7
    v_lshl_add_u32 v12, v10, 2, s13
    v_lshl_add_u32 v13, v11, 10, v12  ; voff0
    v_subrev_u32 v14, 3072, v13       ; voffn
    v_mov_b32 v15, 0x80000000
    v_cmp_eq_u32 vcc, 0, v11
    s_mov_b32 s14, 4096
    s_lshl_b32 s15, s6, 7
    v_cndmask_b32 v14, v14, v15, vcc
    v_lshlrev_b32 v15, 2, v12
    s_lshl_b32 s16, s7, 3
    s_add_u32 s15, s15, s16
    s_lshl_b32 s16, s3, 1
    s_add_u32 s15, s15, s16
    s_lshl_b32 s16, s15, 10
    """)
def p0_loads():
    for j in range(3):
        g.vm(f"buffer_load_dword v{20+j}, v14, {srd(S_K)}, 0 offen offset:{1024*j}", "p0")
    for j in range(8):
        so = "0" if j < 4 else "s14"
        g.vm(f"buffer_load_dword v{23+j}, v13, {srd(S_K)}, {so} offen offset:{1024*(j&3)}", "p0")
    for j in range(8):
        so = "0" if j < 4 else "s14"
        g.vm(f"buffer_load_dword v{32+j}, v13, {srd(S_V)}, {so} offen offset:{1024*(j&3)}", "p0")
    g.vm(f"buffer_load_dwordx4 v[40:43], v15, {srd(S_SK)}, 0 offen", "p0")
    g.vm(f"buffer_load_dwordx4 v[44:47], v{VL16}, {srd(S_Q)}, s16 offen", "p0g")
    g.vm(f"buffer_load_dwordx4 v[48:51], v{VL16}, {srd(S_Q)}, s16 offen offset:1024", "p0g")
    g.vm(f"buffer_load_dwordx4 v[52:55], v{VL16}, {srd(S_GW)}, 0 offen", "p0g")

def p0_compute(q1, q2):
    g.c("---- phase 0 compute")
    g.wvm("p0")
    stamp(18)
    g.side_on(q1, 6)
    for i in range(11):
        e(f"v_lshlrev_b32 v{60+2*i}, 16, v{20+i}")
        e(f"v_and_b32 v{61+2*i}, 0xffff0000, v{20+i}")
    for j in range(8):
        e(f"v_lshlrev_b32 v{84+2*j}, 16, v{32+j}")
        e(f"v_and_b32 v{85+2*j}, 0xffff0000, v{32+j}")
    e("""
    v_lshlrev_b32 v100, 16, v40
    v_lshlrev_b32 v101, 16, v42
    v_and_b32 v102, 0xffff0000, v40
    v_and_b32 v103, 0xffff0000, v42
    v_lshlrev_b32 v104, 16, v41
    v_lshlrev_b32 v105, 16, v43
    v_and_b32 v106, 0xffff0000, v41
    v_and_b32 v107, 0xffff0000, v43
    """)
    def K(i): return f"v[{60+2*i}:{61+2*i}]"
    def S(i): return f"v[{100+2*i}:{101+2*i}]"
    def A(j): return f"v[{110+2*j}:{111+2*j}]"
    for j in range(8): e(f"v_pk_mul_f32 {A(j)}, {K(j)}, {S(3)}")
    for j in range(8): e(f"v_pk_fma_f32 {A(j)}, {K(j+1)}, {S(2)}, {A(j)}")
    for j in range(8): e(f"v_pk_fma_f32 {A(j)}, {K(j+2)}, {S(1)}, {A(j)}")
    for j in range(8): e(f"v_pk_fma_f32 {A(j)}, {K(j+3)}, {S(0)}, {A(j)}")
    for j in range(8): e(f"v_pk_mul_f32 {A(j)}, {A(j)}, v[{84+2*j}:{85+2*j}]")
    for ch in range(2):
        for m in range(4):
            e(f"v_cvt_pk_bf16_f32 v{128+4*ch+m}, v{110+2*(7-2*m)+ch}, v{110+2*(6-2*m)+ch}")
    e(f"""
    v_lshlrev_b32 v17, 11, v12
    v_lshlrev_b32 v18, 1, v11
    v_sub_u32 v17, v17, v18
    v_add_u32 v17, {WS_KVR + 4080}, v17
    """)
    g.side_off(flush=True)
    g.vm(f"buffer_store_dwordx4 v[128:131], v17, {srd(S_WS)}, 0 offen sc1", "kvst")
    g.vm(f"buffer_store_dwordx4 v[132:135], v17, {srd(S_WS)}, s14 offen sc1", "kvst")
    e(f"v_mov_b32 v{VN+2}, 0")
    g.vm(f"buffer_load_dwordx2 v[{VN}:{VN+1}], v{VN+2}, {srd(S_DBG)}, 0 offen sc1", "nonce")
    stamp(19)
    g.wvm("p0g")
    g.side_on(q2, 5)
    for i in range(4):
        e(f"v_lshlrev_b32 v{60+2*i}, 16, v{52+i}")
        e(f"v_and_b32 v{61+2*i}, 0xffff0000, v{52+i}")
    for r in range(2):
        b = 70 + 10 * r
        for i in range(4):
            e(f"v_lshlrev_b32 v{b+2*i}, 16, v{44+4*r+i}")
            e(f"v_and_b32 v{b+2*i+1}, 0xffff0000, v{44+4*r+i}")
        for i in range(4):
            e(f"v_pk_mul_f32 v[{b+2*i}:{b+2*i+1}], v[{b+2*i}:{b+2*i+1}], v[{60+2*i}:{61+2*i}]")
        for i in range(4):
            e(f"v_cvt_pk_bf16_f32 v{90+i}, v{b+2*i}, v{b+2*i+1}")
        for i in range(4):
            e(f"v_lshlrev_b32 v{b+2*i}, 16, v{90+i}")
            e(f"v_and_b32 v{b+2*i+1}, 0xffff0000, v{90+i}")
        e(f"v_pk_add_f32 v[{b}:{b+1}], v[{b}:{b+1}], v[{b+2}:{b+3}]")
        e(f"v_pk_add_f32 v[{b+4}:{b+5}], v[{b+4}:{b+5}], v[{b+6}:{b+7}]")
        e(f"v_pk_add_f32 v[{b}:{b+1}], v[{b}:{b+1}], v[{b+4}:{b+5}]")
        e(f"v_add_f32 v{96+r}, v{b}, v{b+1}")
    g.side_off(flush=True)
    e("s_nop 0")
    for ctl in ("row_shr:1 row_mask:0xf bank_mask:0xf bound_ctrl:0", "row_shr:2 row_mask:0xf bank_mask:0xf bound_ctrl:0",
                "row_shr:4 row_mask:0xf bank_mask:0xf bound_ctrl:0", "row_shr:8 row_mask:0xf bank_mask:0xf bound_ctrl:0",
                "row_bcast:15 row_mask:0xa bank_mask:0xf", "row_bcast:31 row_mask:0xc bank_mask:0xf"):
        e(f"v_add_f32_dpp v96, v96, v96 {ctl}")
        e(f"v_add_f32_dpp v97, v97, v97 {ctl}")
        e("s_nop 0")
    e(f"""
    s_nop 0
    v_readlane_b32 s16, v96, 63
    v_readlane_b32 s17, v97, 63
    v_cmp_eq_u32 vcc, 1, v1
    v_mov_b32 v96, s16
    v_mov_b32 v98, s17
    v_cndmask_b32 v96, v96, v98, vcc
    v_cvt_pk_bf16_f32 v96, v96, v96
    v_lshlrev_b32 v96, 16, v96
    v_mul_f32 v96, 0xbfb8aa3b, v96    ; -log2e * x
    v_exp_f32 v96, v96
    s_lshl_b32 s16, s15, 2
    v_add_f32 v96, 1.0, v96
    v_rcp_f32 v96, v96
    s_add_u32 s16, s16, {WS_G}
    v_cvt_pk_bf16_f32 v96, v96, v96
    v_lshlrev_b32 v96, 16, v96
    v_lshlrev_b32 v97, 2, v1
    s_mov_b64 exec, 3
    """)
    g.vm(f"buffer_store_dword v96, v97, {srd(S_WS)}, s16 offen sc1", "gst")
    e("s_mov_b64 exec, -1")

PH = ENV('PH', 8)
ROT = {8: """s_lshr_b32 s24, s5, 2
    s_and_b32 s27, s5, 3
    s_lshl_b32 s27, s27, 1
    s_add_u32 s24, s24, s27""",
       4: """s_lshr_b32 s24, s5, 2
    s_add_u32 s24, s24, s5
    s_lshl_b32 s24, s24, 1""",
       2: """s_lshr_b32 s24, s5, 2
    s_add_u32 s24, s24, s5
    s_lshl_b32 s24, s24, 2""",
       1: "s_mov_b32 s24, 0"}[PH]
def g1_setup():
    e(f"""
    v_lshrrev_b32 v5, 3, v1
    v_and_b32 v6, 7, v1
    v_lshrrev_b32 v7, 1, v5
    v_xor_b32 v7, v7, v6
    v_xor_b32 v8, 4, v7
    v_lshlrev_b32 v5, 10, v5
    v_lshl_add_u32 v5, v2, 15, v5
    s_lshl_b32 s20, s6, 17
    v_add_u32 v5, s20, v5
    v_lshl_add_u32 v{VX}, v7, 4, v5
    v_lshl_add_u32 v{VX+1}, v8, 4, v5
    v_add_u32 v{VX+2}, {0x4000 - 2048}, v{VX}
    v_add_u32 v{VX+3}, {0x6000 - 3072}, v{VX+1}
    v_add_u32 v{VX+1}, {0x2000 - 1024}, v{VX+1}
    s_mul_i32 s21, s7, 224
    """)
    for k, (nb, imm) in enumerate(((0, 0), (1, 1024), (8, 0), (9, 1024))):
        d = VW1S + k
        e(f"""
        v_lshl_add_u32 v5, v2, 7, v1
        v_add_u32 v5, {64*nb}, v5          ; G
        v_mul_u32_u24 v6, 4682, v5
        v_lshrrev_b32 v6, 16, v6           ; R
        v_mul_u32_u24 v7, 14, v6
        v_sub_u32 v7, v5, v7               ; gq
        v_bfe_u32 v8, v6, 2, 1
        v_bfe_u32 v9, v6, 3, 1
        v_and_b32 v6, 0x73, v6
        v_lshl_add_u32 v6, v8, 3, v6
        v_lshl_add_u32 v6, v9, 2, v6
        v_mul_u32_u24 v6, 3584, v6
        v_lshl_add_u32 v6, v7, 4, v6
        v_add_u32 v6, s21, v6
        v_subrev_u32 v{d}, {imm}, v6
        """)
        if nb >= 8:
            e(f"""
            v_mov_b32 v7, 0x80000000
            v_cmp_le_u32 vcc, 896, v5
            v_cndmask_b32 v{d}, v{d}, v7, vcc
            """)
    e(f"""
    s_lshl_b32 s23, s3, 11
    s_add_u32 s23, s23, 16384         ; w1 lds: 16384 + 2w*1024
    {ROT}
    s_add_u32 s24, s24, 7
    s_and_b32 s24, s24, 7
    s_lshl_b32 s27, s24, 7
    """)
def g1_setup2():
    e(f"""
    v_lshrrev_b32 v5, 1, v3           ; t>>1
    v_xor_b32 v5, v5, v4              ; q ^ (t>>1)
    v_lshlrev_b32 v5, 4, v5
    v_lshl_add_u32 v5, v3, 7, v5      ; t*128 + ..
    v_lshl_add_u32 v{VXR}, v2, 12, v5
    v_xor_b32 v{VXR+3}, 64, v{VXR}
    v_add_u32 v{VXR+1}, 0x10000, v{VXR}
    v_add_u32 v{VXR+2}, 0x20000, v{VXR}
    v_add_u32 v{VXR+4}, 0x10000, v{VXR+3}
    v_add_u32 v{VXR+5}, 0x20000, v{VXR+3}
    v_lshrrev_b32 v5, 1, v4           ; q>>1
    v_and_b32 v6, 1, v4
    v_lshl_add_u32 v5, v5, 2, v6      ; 4(q>>1)+(q&1)
    v_mul_u32_u24 v5, 896, v5
    v_bfe_u32 v6, v1, 2, 2            ; r
    v_mul_u32_u24 v6, 224, v6
    v_add_u32 v5, v5, v6
    v_and_b32 v6, 3, v1
    v_lshl_add_u32 v{VW1R}, v6, 3, v5
    v_add_u32 v{VW1R}, 16384, v{VW1R}
    v_add_u32 v{VW1R+1}, 0x10000, v{VW1R}
    v_add_u32 v{VW1R+2}, 0x20000, v{VW1R}
    """)
    e(f"""
    v_lshrrev_b32 v5, 3, v1           ; e
    v_bfe_u32 v6, v1, 1, 2            ; pospair
    v_and_b32 v7, 1, v1               ; half
    v_bfe_u32 v8, v5, 1, 1            ; (e>>1)&1
    v_xor_b32 v6, v6, v8
    v_xor_b32 v8, 2, v6
    v_and_b32 v9, 3, v5
    v_lshrrev_b32 v5, 2, v5           ; e>>2
    v_lshl_add_u32 v9, v5, 4, v9      ; (e&3) + 16(e>>2)
    v_lshlrev_b32 v9, 10, v9
    v_lshl_add_u32 v9, v7, 4, v9
    s_mul_i32 s30, s3, {448*1024}
    s_lshl_b32 s31, s9, 7
    s_add_u32 s30, s30, s31
    v_add_u32 v9, s30, v9
    v_lshl_add_u32 v{VW2}, v6, 5, v9
    v_lshl_add_u32 v{VW2+1}, v8, 5, v9
    v_add_u32 v{VW2+2}, {8192 - 2048}, v{VW2}
    v_add_u32 v{VW2+3}, {12288 - 3072}, v{VW2+1}
    v_add_u32 v{VW2+1}, {4096 - 1024}, v{VW2+1}
    v_mul_u32_u24 v{VTD+3}, {96*1024}, v5
    s_and_b32 s24, s5, 3
    s_lshr_b32 s25, s5, 2
    s_add_u32 s24, s24, s25
    s_add_u32 s24, s24, s4
    """)
    for jp in range(4):
        e(f"""
        s_add_u32 s25, s24, {jp}
        s_and_b32 s25, s25, 3
        s_mul_i32 s{94+jp}, s25, {112*1024}
        """)

def g1_issue_items(c):
    slot = c % NSLOT
    it = []
    it.append(light(lambda: e("s_add_u32 s27, s27, 128")))
    it.append(light(lambda: e("s_and_b32 s27, s27, 1023")))
    it.append(light(lambda: e("s_mul_i32 s29, s27, 1792")))
    it.append(light(lambda: e(f"s_add_u32 m0, s23, {slot*SLOT}")))
    def w(k): return lambda: g.vm(f"buffer_load_dwordx4 v{VW1S+k}, {srd(S_W1)}, s29 offen offset:{1024*(k&1)} lds", f"c{c}")
    def x(j): return lambda: g.vm(f"buffer_load_dwordx4 v{VX+j}, {srd(S_Q)}, s27 offen offset:{1024*j} lds", f"c{c}")
    it += [M0GAP, w(0), w(1), light(lambda: e(f"s_add_u32 m0, s23, {slot*SLOT + 8192}")), M0GAP, w(2), w(3),
           light(lambda: e(f"s_add_u32 m0, s22, {slot*SLOT}")), M0GAP, x(0), x(1), x(2), x(3)]
    return it
def _m0gap():
    if " m0," in g.L[-1]: e("s_nop 0")
M0GAP = light(_m0gap)

def w2_soff(p):
    if p < 12: return f"s{94 + p // 3}", (p % 3) * 32 * 1024
    return None, (96 + 224 * (p - 12)) * 1024
def w2_issue_items(p):
    assert p < 12
    sr, ex = w2_soff(p)
    it = [light(lambda: e(f"s_add_u32 s26, {sr}, {ex}")), light(lambda: e(f"s_add_u32 m0, s22, {WG_[p % 7]}")), M0GAP]
    def d(jj): return lambda: g.vm(f"buffer_load_dwordx4 v{VW2+jj}, {srd(S_W2)}, s26 offen offset:{1024*jj} lds", f"w2_{p}")
    return it + [d(jj) for jj in range(4)]
def w2_stage_items(p):
    sr, ex = w2_soff(p)
    b = STG + 16 * (p - 7)
    it = []
    if p < 12:
        it.append(light(lambda: e(f"s_add_u32 s26, {sr}, {ex}")))
        va = [VW2 + jj for jj in range(4)]
    else:
        it.append(light(lambda: e(f"s_mov_b32 s26, {ex}")))
        va = [VW2C + jj for jj in range(4)]
    def d(jj): return lambda: g.vm(f"buffer_load_dwordx4 v[{b+4*jj}:{b+4*jj+3}], v{va[jj]}, {srd(S_W2)}, s26 offen offset:{1024*jj}", f"w2_{p}")
    return it + [d(jj) for jj in range(4)]
VW2C = 236

def g1_reads(s):
    c, kk = s // 2, s % 2
    slot = c % NSLOT
    rng, so = slot >> 1, (slot & 1) * SLOT
    b = s & 1
    def xr(tt):
        return lambda: g.ds(f"ds_read_b128 v[{XF[b]+4*tt}:{XF[b]+4*tt+3}], v{VXR+3*kk+rng} offset:{so+2048*tt}", f"a{s}")
    def wr(i, hh):
        return lambda: g.ds(f"ds_read_b64_tr_b16 v[{WF[b]+4*i+2*hh}:{WF[b]+4*i+2*hh+1}], v{VW1R+rng} offset:{so+kk*7168+hh*1792+32*i}", f"a{s}" if i < 3 else f"b{s}")
    return [xr(0), xr(1)] + [wr(i, hh) for i in range(7) for hh in range(2)]
def g1_mfmas(s):
    b = s & 1
    def mf(i, tt):
        def f():
            a = ACC1 + (tt * 7 + i) * 4
            c_ = f"v[{a}:{a+3}]" if s > 0 else "0"
            e(f"v_mfma_f32_16x16x32_bf16 v[{a}:{a+3}], v[{WF[b]+4*i}:{WF[b]+4*i+3}], v[{XF[b]+4*tt}:{XF[b]+4*tt+3}], {c_}")
        return f
    return [mf(i, tt) for i in range(7) for tt in range(2)]

def flag_store(saddr_lines, sreg, tag):
    e(saddr_lines)
    e("v_mov_b32 v252, s88")
    e("v_mov_b32 v253, s89")
    e("s_mov_b64 exec, 1")
    if tag: g.vm(f"buffer_store_dwordx2 v[252:253], v{VN+2}, {srd(S_WS)}, {sreg} offen sc1", tag)
    else: e(f"buffer_store_dwordx2 v[252:253], v{VN+2}, {srd(S_WS)}, {sreg} offen sc1")
    e("s_mov_b64 exec, -1")

def poll_issue(sreg, nlanes, tag):
    e("v_lshlrev_b32 v250, 3, v1")
    if nlanes < 64:
        e(f"v_and_b32 v250, {nlanes*8-1}, v250")
    g.vm(f"buffer_load_dwordx2 v[246:247], v250, {srd(S_WS)}, {sreg} offen sc1", tag)
def poll_check(sreg, tag):
    lab = g.newlab("L_poll"); done = g.newlab("L_pdone")
    g.wvm(tag)
    e("v_cmp_ne_u64 vcc, s[88:89], v[246:247]")
    e("s_mov_b32 s90, 0")
    e(f"s_cbranch_vccz {done}")
    g.lab(lab)
    e("s_sleep 1")
    e(f"buffer_load_dwordx2 v[246:247], v250, {srd(S_WS)}, {sreg} offen sc1")
    e("s_waitcnt vmcnt(0)")
    e("v_cmp_ne_u64 vcc, s[88:89], v[246:247]")
    e("s_add_u32 s90, s90, 1")
    e("s_cmp_lt_u32 s90, 0x4000")
    e(f"s_cbranch_scc0 {done}")
    e(f"s_cbranch_vccnz {lab}")
    g.lab(done)
def nonce_check():
    lab = g.newlab("L_npoll"); done = g.newlab("L_ndone")
    e(f"v_readfirstlane_b32 s89, v{VN+1}")
    e("s_mov_b32 s90, 0")
    e("s_cmp_lg_u32 s89, 0")
    e(f"s_cbranch_scc1 {done}")
    g.lab(lab)
    e("s_sleep 1")
    e(f"buffer_load_dwordx2 v[{VN}:{VN+1}], v{VN+2}, {srd(S_DBG)}, 0 offen sc1")
    e("s_waitcnt vmcnt(0)")
    e(f"v_readfirstlane_b32 s89, v{VN+1}")
    e("s_add_u32 s90, s90, 1")
    e("s_cmp_lt_u32 s90, 0x4000")
    e(f"s_cbranch_scc0 {done}")
    e("s_cmp_eq_u32 s89, 0")
    e(f"s_cbranch_scc1 {lab}")
    g.lab(done)
    e(f"v_readfirstlane_b32 s88, v{VN}")

def toep_items(part):
    it = []
    for s_ in part:
        it.append(light(lambda s_=s_: e(f"s_add_u32 m0, s17, {s_*TP + 32}")))
        it.append(light(lambda s_=s_: e(f"s_add_u32 s26, s37, {2*s_}")))
        for hh in range(2):
            it.append(lambda hh=hh: g.vm(f"buffer_load_dwordx4 v{VL16}, {srd(S_SSMK)}, s26 offen offset:{1024*hh} lds", "toep"))
    return it

def ssm_items():
    return [lambda: g.vm(f"buffer_load_dwordx4 v[{SSM}:{SSM+3}], v{VL16}, {srd(S_SSMK)}, s37 offen", "ssm"),
            lambda: g.vm(f"buffer_load_dwordx2 v[{SSM+4}:{SSM+5}], v{VL16}, {srd(S_SSMK)}, s37 offen offset:16", "ssm"),
            lambda: g.vm(f"buffer_load_dwordx4 v[{SSM+6}:{SSM+9}], v{VL16}, {srd(S_SSMK)}, s37 offen offset:1024", "ssm"),
            lambda: g.vm(f"buffer_load_dwordx2 v[{SSM+10}:{SSM+11}], v{VL16}, {srd(S_SSMK)}, s37 offen offset:1040", "ssm"),
            lambda: g.vm(f"buffer_load_dwordx2 v[{SSM+16}:{SSM+17}], v{VN+2}, {srd(S_SSMK)}, s35 offen", "ssm")]
def touch_items():
    if ENV('NOTOUCH', 0): return []
    return [lambda: g.vm(f"buffer_load_dword v248, v{VTD+1}, {srd(S_W2)}, 0 offen", "touch"),
            lambda: g.vm(f"buffer_load_dword v249, v{VTD+2}, {srd(S_W2)}, 0 offen", "touch")]
PACE1 = ENV('PACE1', 2)
def gemm1(q):
    g.c("---- GEMM1")
    e(f"""
    s_mul_i32 s16, s32, {4*TP}
    s_add_u32 s16, s16, {L_TOEP}
    s_add_u32 s17, s16, s36
    s_lshl_b32 s24, s5, 2
    s_add_u32 s24, s24, s3
    s_mul_i32 s24, s24, {112*128}
    v_lshlrev_b32 v{VTD}, 7, v1
    v_add_u32 v{VTD+1}, s24, v{VTD}
    v_mov_b32 v5, 0x80000000
    v_cmp_gt_u32 vcc, 48, v1
    v_add_u32 v{VTD+2}, 8192, v{VTD+1}
    v_cndmask_b32 v{VTD+2}, v5, v{VTD+2}, vcc
    v_cmp_gt_u32 vcc, 16, v1
    v_cndmask_b32 v{VTD}, v5, v{VTD}, vcc
    """)
    g.wvm("c0")
    g.wds_all()
    e("s_barrier")
    for it in g1_reads(0): it()
    for s in range(16):
        c = s // 2
        if s % 2 == 0: stamp(21 + s // 2)
        fixed = {}
        if s % 2 == 1 and c + 1 < 8:
            assert g.vmq.count(f"c{c+1}") == 8, (c, g.vmq.count(f"c{c+1}"))
            vt = [f"c{c+1}"]
            if c + 1 == 3: vt += ["kvst", "nonce"]
            if c + 1 == 4: vt += ["gst"]
            g.wboth(vt, [f"a{s}", f"b{s}"])
            if c + 1 == 3: nonce_check()
            e("s_barrier")
            if c + 1 == 3:
                lab = g.newlab("L_kvsig")
                e("s_cmp_lg_u32 s3, 0")
                e(f"s_cbranch_scc1 {lab}")
                flag_store(f"""
                s_lshl_b32 s91, s11, 8
                s_lshl_b32 s92, s5, 3
                s_add_u32 s91, s91, s92
                s_add_u32 s91, s91, {MB_KV}
                """, "s91", None)
                g.lab(lab)
            if c <= 2: q.extend(g1_issue_items(c + 5))
            if c == 2: q.extend(ssm_items() + touch_items())
        else:
            g.wds(f"a{s}")
            fixed.setdefault(4, []).append(lambda s=s: g.wds(f"b{s}"))
        if s == 12:
            def pk():
                e(f"s_lshl_b32 s93, s4, 8")
                e(f"s_add_u32 s93, s93, {MB_KV}")
                poll_issue("s93", 32, "pollkv")
            fixed.setdefault(10, []).append(pk)
        if s + 1 < 16: place(fixed, g1_reads(s + 1), 0, 2)
        run_slots(g1_mfmas(s), fixed, q, cap=2, pace=PACE1 if s + 1 < 16 else 2, qstart=8 if s + 1 < 16 else 0)

T0 = 216
def silu_tile(a, dst):
    t = T0
    e(f"""
    v_cvt_pk_bf16_f32 v{t+4}, v{a}, v{a+1}
    v_cvt_pk_bf16_f32 v{t+5}, v{a+2}, v{a+3}
    v_lshlrev_b32 v{t+6}, 16, v{t+4}
    v_and_b32 v{t+7}, 0xffff0000, v{t+4}
    v_lshlrev_b32 v{t+8}, 16, v{t+5}
    v_and_b32 v{t+9}, 0xffff0000, v{t+5}
    v_pk_mul_f32 v[{t}:{t+1}], v[{t+6}:{t+7}], s[12:13]
    v_pk_mul_f32 v[{t+2}:{t+3}], v[{t+8}:{t+9}], s[12:13]
    v_exp_f32 v{t}, v{t}
    v_exp_f32 v{t+1}, v{t+1}
    v_exp_f32 v{t+2}, v{t+2}
    v_exp_f32 v{t+3}, v{t+3}
    v_pk_add_f32 v[{t}:{t+1}], v[{t}:{t+1}], 1.0 op_sel_hi:[1,0]
    v_pk_add_f32 v[{t+2}:{t+3}], v[{t+2}:{t+3}], 1.0 op_sel_hi:[1,0]
    v_rcp_f32 v{t}, v{t}
    v_rcp_f32 v{t+1}, v{t+1}
    v_rcp_f32 v{t+2}, v{t+2}
    v_rcp_f32 v{t+3}, v{t+3}
    v_pk_mul_f32 v[{t}:{t+1}], v[{t}:{t+1}], v[{t+6}:{t+7}]
    v_pk_mul_f32 v[{t+2}:{t+3}], v[{t+2}:{t+3}], v[{t+8}:{t+9}]
    v_cvt_pk_bf16_f32 v{dst}, v{t}, v{t+1}
    v_cvt_pk_bf16_f32 v{dst+1}, v{t+2}, v{t+3}
    """)

def g1_epilogue(q):
    g.c("---- GEMM1 epilogue")
    e(f"""
    s_mov_b32 s12, 0xbfb8aa3b
    s_mov_b32 s13, 0xbfb8aa3b
    s_lshl_b32 s14, s6, 3
    s_lshl_b32 s15, s3, 1
    s_add_u32 s14, s14, s15
    s_mul_i32 s14, s14, 57344
    s_lshr_b32 s15, s7, 2
    s_mul_i32 s15, s15, 14336             ; quarter
    s_add_u32 s14, s14, s15
    s_add_u32 s14, s14, {WS_HF}
    s_and_b32 s15, s7, 3
    s_lshl_b32 s18, s15, 9
    s_add_u32 s18, s18, s14
    s_add_u32 s18, s18, 12288
    s_add_u32 s19, s18, 57344
    s_mul_i32 s15, s15, 3072
    s_add_u32 s14, s14, s15
    s_add_u32 s15, s14, 57344
    v_lshlrev_b32 v5, 3, v1               ; lane*8
    """)
    e("s_barrier")
    for jj in range(4):
        e(f"v_add_u32 v{VW2C+jj}, v{VW2+jj}, v{VTD+3}")
    assert not q
    NS = ENV('NSILU', 2)
    for p in range(NS): q.extend(w2_issue_items(p))
    g.side_on(q, ENV('SIDE_SILU', 20))
    for tt in range(2):
        for pr in range(3):
            a = ACC1 + (tt * 7 + 2 * pr) * 4
            silu_tile(a, a)
            silu_tile(a + 4, a + 2)
            g.vm(f"buffer_store_dwordx4 v[{a}:{a+3}], v{VL16}, {srd(S_WS)}, s{14+tt} offen offset:{1024*pr} sc1", "hst")
        a = ACC1 + (tt * 7 + 6) * 4
        silu_tile(a, a)
        g.vm(f"buffer_store_dwordx2 v[{a}:{a+1}], v5, {srd(S_WS)}, s{18+tt} offen sc1", "hst")
    g.side_off()

CA = [0, 64]
CB = [32, 96]
def conv_prep(q):
    g.c("---- conv prep")
    while q: q.pop(0)()
    poll_check("s93", "pollkv")
    Z = ZR
    e(f"""
    s_mul_i32 s18, s32, {URP}
    s_add_u32 s18, s18, {L_UR}
    s_add_u32 m0, s18, s36
    s_add_u32 s38, s37, {WS_KVR}
    """)
    g.vm(f"buffer_load_dwordx4 v{VL16}, {srd(S_WS)}, s38 offen sc1 lds", "ur")
    g.vm(f"buffer_load_dwordx4 v{VL16}, {srd(S_WS)}, s38 offen offset:1024 sc1 lds", "ur")
    g.wvm("ssm")
    e(f"""
    v_mov_b32 v{Z}, 0
    v_mov_b32 v{Z+1}, 0
    v_mov_b32 v{Z+2}, 0
    v_mov_b32 v{Z+3}, 0
    v_and_b32 v11, 1, v1
    v_cmp_eq_u32 vcc, 1, v11
    v_lshl_add_u32 v14, v11, 4, s16
    v_add_u32 v13, s17, v{VL16}
    v_add_u32 v12, s18, v{VL16}
    v_cndmask_b32 v{Z+4}, 0, v{Z+4}, vcc
    v_cndmask_b32 v{Z+5}, 0, v{Z+5}, vcc
    """)
    def copies(d, vaddr, off, t):
        g.ds(f"ds_write_b128 {vaddr}, v[{d}:{d+3}] offset:{off}")
        e(f"""
        v_alignbyte_b32 v{t}, v{d+1}, v{d}, 2
        v_alignbyte_b32 v{t+1}, v{d+2}, v{d+1}, 2
        v_alignbyte_b32 v{t+2}, v{d+3}, v{d+2}, 2
        v_alignbyte_b32 v{t+3}, v{d+4}, v{d+3}, 2
        """)
        g.ds(f"ds_write_b128 {vaddr}, v[{t}:{t+3}] offset:{off+TP}")
        e(f"""
        v_mov_b32 v{t+4}, v{d+1}
        v_mov_b32 v{t+5}, v{d+2}
        v_mov_b32 v{t+6}, v{d+3}
        v_mov_b32 v{t+7}, v{d+4}
        """)
        g.ds(f"ds_write_b128 {vaddr}, v[{t+4}:{t+7}] offset:{off+2*TP}")
        e(f"""
        v_mov_b32 v{t+8}, v{t+1}
        v_mov_b32 v{t+9}, v{t+2}
        v_mov_b32 v{t+10}, v{t+3}
        v_alignbyte_b32 v{t+11}, v{d+5}, v{d+4}, 2
        """)
        g.ds(f"ds_write_b128 {vaddr}, v[{t+8}:{t+11}] offset:{off+3*TP}")
    copies(SSM, "v13", 32, 76)
    copies(SSM + 6, "v13", 32 + 1024, 88)
    g.ds(f"ds_write_b128 v12, v[{Z}:{Z+3}] offset:4096")
    e("s_mov_b64 exec, 3")
    copies(Z, "v14", 0, 100)
    e("s_mov_b64 exec, -1")
    e(f"""
    v_add_u32 v10, 1, v3
    v_and_b32 v11, 3, v10
    v_sub_u32 v10, v10, v11
    v_mul_u32_u24 v11, {TP}, v11
    v_lshl_add_u32 v13, v10, 1, v11
    v_lshl_add_u32 v13, v4, 4, v13
    s_lshl_b32 s19, s33, 8
    s_add_u32 s24, s16, s19
    v_add_u32 v13, s24, v13
    v_lshlrev_b32 v10, 5, v3
    v_lshlrev_b32 v11, 4, v4
    v_sub_u32 v14, v11, v10
    s_add_u32 s24, s18, s19
    s_add_u32 s24, s24, 480
    v_add_u32 v14, s24, v14
    """)
    g.wvm("ur")
    hflag()
    g.wds_all()
    e("s_barrier")
    for p in range(ENV('NSILU', 2), 7): q.extend(w2_issue_items(p))
    for p in range(7, 14): q.extend(w2_stage_items(p))

def hflag():
    g.wvm("hst")
    flag_store(f"""
    s_lshl_b32 s91, s6, 1
    s_add_u32 s91, s91, s32
    s_lshl_b32 s91, s91, 8
    s_lshl_b32 s92, s7, 4
    s_add_u32 s91, s91, s92
    s_lshl_b32 s92, s33, 3
    s_add_u32 s91, s91, s92
    s_add_u32 s91, s91, {MB_H}
    """, "s91", "hflag")

def conv_reads(b0):
    b = b0 & 1
    def tg(n): return f"ca{b0}" if n < 3 else f"cb{b0}"
    def ar(b1, hh):
        return lambda: g.ds(f"ds_read_b64 a[{CA[b]+4*b1+2*hh}:{CA[b]+4*b1+2*hh+1}], v13 offset:{64*(8*b1+b0)+8*hh}", tg(b1))
    def br(x):
        return lambda: g.ds(f"ds_read_b128 a[{CB[b]+4*x}:{CB[b]+4*x+3}], v14 offset:{64*b0+512*(7-x)}", tg(x))
    items = []
    for n in range(8): items += [ar(n, 0), ar(n, 1), br(n)]
    return items
def conv_mfmas(b0):
    b = b0 & 1
    pairs = [(b1, x) for b1 in range(8) for x in range(8 - b1)]
    pairs.sort(key=lambda p: (max(p), p[0] + p[1]))
    seen = set()
    items = []
    def mf(b1, x, first):
        def f():
            a = CACC + 4 * (x + b1)
            c_ = "0" if first else f"v[{a}:{a+3}]"
            e(f"v_mfma_f32_16x16x32_bf16 v[{a}:{a+3}], a[{CA[b]+4*b1}:{CA[b]+4*b1+3}], a[{CB[b]+4*x}:{CB[b]+4*x+3}], {c_}")
        return f
    for (b1, x) in pairs:
        first = (b0 == 0) and ((b1 + x) not in seen)
        seen.add(b1 + x)
        items.append(mf(b1, x, first))
    return items

def hblk(p): return 128 + 16 * p if p < 6 else 16 * (p - 6)
def h_load_items():
    items = []
    def ld(p, tau):
        a = hblk(p) + 4 * tau
        return lambda: g.vm(f"buffer_load_dwordx4 a[{a}:{a+3}], v{VH+tau}, {srd(S_WS)}, s{26 + p // 3} offen offset:{1024*(p%3)} sc1", f"h{p}")
    def ld6(p, tau, hf):
        a = hblk(p) + 4 * tau + 2 * hf
        return lambda: g.vm(f"buffer_load_dwordx2 a[{a}:{a+1}], v{VH8+tau}, {srd(S_WS)}, 0 offen offset:{512*(2*(p-12)+hf)} sc1", f"h{p}")
    for p in range(12):
        for tau in range(4): items.append(ld(p, tau))
    for p in (12, 13):
        for tau in range(4):
            items += [ld6(p, tau, 0), ld6(p, tau, 1)]
    return items

def conv(q):
    g.c("---- conv main")
    for it in conv_reads(0): it()
    for b0 in range(4):
        fixed = {}
        g.wds(f"ca{b0}")
        fixed.setdefault(7, []).append(lambda b0=b0: g.wds(f"cb{b0}"))
        if b0 < 3: place(fixed, conv_reads(b0 + 1), 9, 1)
        if b0 == 3:
            def ph():
                e(f"s_lshl_b32 s93, s8, 8")
                e(f"s_lshl_b32 s92, s3, 6")
                e(f"s_add_u32 s93, s93, s92")
                e(f"s_add_u32 s93, s93, {MB_H}")
                poll_issue("s93", 8, "pollh")
            fixed.setdefault(10, []).append(ph)
            def hs():
                e(f"""
                s_mul_i32 s24, s3, 14336
                s_add_u32 s24, s24, {WS_HF}
                v_lshlrev_b32 v5, 3, v1
                """)
                for tau in range(4):
                    e(f"""
                    s_add_u32 s25, s3, {tau}
                    s_and_b32 s25, s25, 3
                    s_lshl_b32 s31, s8, 2
                    s_add_u32 s25, s25, s31
                    s_mul_i32 s25, s25, 57344
                    s_add_u32 s25, s25, s24
                    v_add_u32 v{VH+tau}, s25, v{VL16}
                    s_add_u32 s25, s25, 12288
                    v_add_u32 v{VH8+tau}, s25, v5
                    """)
            fixed.setdefault(14, []).append(hs)
        run_slots(conv_mfmas(b0), fixed, q, cap=2, pace=ENV('PACEC', 3))
    while q: q.pop(0)()
    stamp(6)
    for jp in range(4):
        e(f"s_mul_hi_u32 s{26+jp}, s{94+jp}, {(1 << 32) * 3072 // (112 * 1024) + 1}")
    poll_check("s93", "pollh")
    stamp(7)
    hl = h_load_items()
    for _ in range(8): hl.pop(0)()
    e("s_barrier")
    e(f"""
    s_add_u32 s24, s22, {L_CRED}
    v_add_u32 v11, s24, v{VL16}
    s_xor_b32 s24, s24, 4096
    v_add_u32 v12, s24, v{VL16}
    s_cmp_eq_u32 s33, 0
    s_cbranch_scc1 L_cr_e0
    """)
    for n in range(4):
        e(f"ds_write_b128 v11, v[{CACC+4*n}:{CACC+4*n+3}] offset:{1024*n}")
    e("s_waitcnt lgkmcnt(0)")
    for r in range(16):
        e(f"v_mov_b32 v{CACC+r}, v{CACC+16+r}")
    e("s_branch L_cr_join")
    g.lab("L_cr_e0")
    for n in range(4):
        e(f"ds_write_b128 v11, v[{CACC+16+4*n}:{CACC+16+4*n+3}] offset:{1024*n}")
    g.lab("L_cr_join")
    for _ in range(4): hl.pop(0)()
    g.wds_all()
    e("s_barrier")
    for n in range(4):
        g.ds(f"ds_read_b128 v[{52+4*n}:{55+4*n}], v12 offset:{1024*n}", "cred")
    e(f"""
    v_lshlrev_b32 v10, 5, v3
    v_lshl_add_u32 v10, v4, 3, v10    ; 2*(16n+4q)
    s_sub_u32 s24, s18, s36
    s_add_u32 s24, s24, {4088 - 1536}
    v_sub_u32 v11, s24, v10
    """)
    for n in range(4):
        g.ds(f"ds_read_b64 v[{68+2*n}:{69+2*n}], v11 offset:{1536 - 512*n}", "ckv")
    for _ in range(4): hl.pop(0)()
    e(f"""
    s_lshl_b32 s24, s32, 4
    s_lshr_b32 s24, s39, s24
    s_lshl_b32 s24, s24, 16           ; D[d] as f32
    s_lshl_b32 s25, s3, 11
    s_add_u32 s25, s25, {L_CRED + 16384}
    v_add_u32 v11, s25, v10
    v_add_u32 v13, s25, v{VL16}
    """)
    g.wds("cred", "ckv")
    g.side_on(hl, 10)
    for n in range(4):
        a = CACC + 4 * n
        e(f"""
        v_pk_add_f32 v[{a}:{a+1}], v[{a}:{a+1}], v[{52+4*n}:{53+4*n}]
        v_pk_add_f32 v[{a+2}:{a+3}], v[{a+2}:{a+3}], v[{54+4*n}:{55+4*n}]
        v_and_b32 v188, 0xffff0000, v{69+2*n}
        v_lshlrev_b32 v189, 16, v{69+2*n}
        v_and_b32 v190, 0xffff0000, v{68+2*n}
        v_lshlrev_b32 v191, 16, v{68+2*n}
        v_fma_f32 v{a}, v188, s24, v{a}
        v_fma_f32 v{a+1}, v189, s24, v{a+1}
        v_fma_f32 v{a+2}, v190, s24, v{a+2}
        v_fma_f32 v{a+3}, v191, s24, v{a+3}
        v_cvt_pk_bf16_f32 v{192+2*n}, v{a}, v{a+1}
        v_cvt_pk_bf16_f32 v{193+2*n}, v{a+2}, v{a+3}
        """)
        g.ds(f"ds_write_b64 v11, v[{192+2*n}:{193+2*n}] offset:{512*n}", "cw")
    g.side_off()
    g.ds("ds_read_b128 v[188:191], v13", "cr2")
    g.ds("ds_read_b128 v[200:203], v13 offset:1024", "cr2")
    return hl

W2F = [224, 240]
def w2f(p):
    if p <= 11: return W2F[p & 1]
    return W2F[0] if p == 12 else hblk(0)
def g2_reads(p):
    grp = WG_[p % 7]
    rng = grp >> 16
    off = grp & 0xffff
    fb = w2f(p)
    def rd(i, hh):
        return lambda: g.ds(f"ds_read_b64_tr_b16 a[{fb+4*i+2*hh}:{fb+4*i+2*hh+1}], v{VW2R+4*rng+i} offset:{off+hh*512}", f"v{p}")
    return [rd(i, hh) for i in range(4) for hh in range(2)]
def g2_mf(p, i, tau):
    def f():
        a = ACC2 + (i * 4 + tau) * 4
        h = hblk(p) + 4 * tau
        fb = w2f(p)
        c_ = f"v[{a}:{a+3}]" if p > 0 else "0"
        e(f"v_mfma_f32_16x16x32_bf16 v[{a}:{a+3}], a[{fb+4*i}:{fb+4*i+3}], a[{h}:{h+3}], {c_}")
    return f
def g2_stage_writes(p):
    grp = WG_[p % 7]
    rng = grp >> 16
    off = grp & 0xffff
    b = STG + 16 * (p - 7)
    def w(jj):
        def f():
            if jj == 0: g.wvm(f"w2_{p}")
            g.ds(f"ds_write_b128 v{VSW+rng}, v[{b+4*jj}:{b+4*jj+3}] offset:{off+1024*jj}", f"sw{p}")
        return f
    return [w(jj) for jj in range(4)]
VSW = 243

def gemm2(hl):
    g.c("---- GEMM2")
    e(f"""
    v_bfe_u32 v10, v1, 2, 2           ; r
    v_lshrrev_b32 v11, 1, v10
    v_and_b32 v5, 1, v4
    v_lshl_add_u32 v11, v5, 1, v11    ; s(k)
    v_lshl_add_u32 v10, v4, 3, v10    ; 8q + r
    v_lshlrev_b32 v10, 7, v10
    v_and_b32 v5, 3, v1
    v_lshl_add_u32 v10, v5, 3, v10
    v_add_u32 v10, s22, v10
    v_add_u32 v{VSW}, s22, v{VL16}
    v_add_u32 v{VSW+1}, 0x10000, v{VSW}
    v_add_u32 v{VSW+2}, 0x20000, v{VSW}
    s_add_u32 s24, s37, {WS_Y2}
    """)
    g.wds("cr2")
    g.vm(f"buffer_store_dwordx4 v[188:191], v{VL16}, {srd(S_WS)}, s24 offen sc1", "yst")
    g.vm(f"buffer_store_dwordx4 v[200:203], v{VL16}, {srd(S_WS)}, s24 offen offset:1024 sc1", "yst")
    for i in range(4):
        e(f"v_xor_b32 v5, {i}, v11")
        e(f"v_lshl_add_u32 v{VW2R+i}, v5, 5, v10")
        e(f"v_add_u32 v{VW2R+4+i}, 0x10000, v{VW2R+i}")
        e(f"v_add_u32 v{VW2R+8+i}, 0x20000, v{VW2R+i}")
    stamp(8)
    g.wvm("w2_0", "w2_1", "w2_2", "w2_3", "w2_4", "w2_5", "w2_6")
    for it in g2_reads(0): it()
    HP = ENV('HPACE', 3)
    for p in range(11):
        fixed = {}
        while g.vmq.count(f"h{p}") < 4: hl.pop(0)()
        g.wboth([f"h{p}"], [f"v{p}"])
        place(fixed, g2_reads(p + 1), 0, 1)
        if 1 <= p <= 7: place(fixed, g2_stage_writes(p + 6), 8, 1)
        if p == 10:
            place(fixed, g2_reads(13), 8, 1)
        if p == 3:
            def yf():
                g.wvm("yst")
                flag_store(f"""
                s_lshl_b32 s91, s4, 1
                s_add_u32 s91, s91, s33
                s_lshl_b32 s91, s91, 9
                s_lshl_b32 s92, s5, 4
                s_add_u32 s91, s91, s92
                s_lshl_b32 s92, s32, 3
                s_add_u32 s91, s91, s92
                s_add_u32 s91, s91, {MB_Y}
                """, "s91", "yflag")
            fixed.setdefault(12, []).append(yf)
        if p == 8:
            fixed.setdefault(12, []).append(lambda: e("s_barrier"))
        if p == 9:
            def py():
                e(f"""
                s_lshl_b32 s93, s9, 1
                s_lshr_b32 s92, s8, 4
                s_add_u32 s93, s93, s92
                s_lshl_b32 s93, s93, 9
                s_add_u32 s93, s93, {MB_Y}
                """)
                poll_issue("s93", 64, "polly")
            fixed.setdefault(9, []).append(py)
        mf = [g2_mf(p, i, tau) for i in range(4) for tau in range(4)]
        run_slots(mf, fixed, hl, cap=2, pace=HP)
    while hl: hl.pop(0)()
    stamp(9)
    Y0 = STG
    poll_check("s93", "polly")
    e(f"""
    v_lshrrev_b32 v5, 3, v1
    v_and_b32 v6, 7, v1
    v_lshlrev_b32 v7, 12, v5
    v_lshl_add_u32 v7, v6, 4, v7
    v_lshlrev_b32 v5, 10, v5
    v_lshl_add_u32 v5, v6, 4, v5
    s_lshl_b32 s24, s9, 6
    s_lshl_b32 s25, s3, 4
    s_add_u32 s24, s24, s25           ; d0 = 64cb2 + 16w
    s_lshl_b32 s24, s24, 12
    s_lshl_b32 s25, s8, 7
    s_add_u32 s24, s24, s25
    s_add_u32 s24, s24, {WS_Y2}
    s_add_u32 s25, s24, {32768 - 1024}
    s_add_u32 m0, s22, {L_QY + 2048}
    s_lshl_b32 s31, s8, 6
    """)
    g.vm(f"buffer_load_dwordx4 v7, {srd(S_WS)}, s24 offen sc1 lds", "yld")
    g.vm(f"buffer_load_dwordx4 v7, {srd(S_WS)}, s25 offen offset:1024 sc1 lds", "yld")
    e(f"""
    s_lshl_b32 s25, s3, 4
    s_add_u32 s31, s31, s25
    s_lshl_b32 s25, s31, 2
    s_add_u32 s25, s25, {WS_G}
    v_lshlrev_b32 v6, 2, v3
    s_add_u32 m0, s22, {L_QY}
    s_lshl_b32 s24, s31, 10
    """)
    g.vm(f"buffer_load_dword v{Y0}, v6, {srd(S_WS)}, s25 offen sc1", "gld")
    e(f"""
    s_lshl_b32 s25, s9, 7
    s_add_u32 s31, s24, s25
    s_add_u32 s24, s31, {8192 - 1024}
    """)
    g.vm(f"buffer_load_dwordx4 v5, {srd(S_Q)}, s31 offen lds", "qld")
    g.vm(f"buffer_load_dwordx4 v5, {srd(S_Q)}, s24 offen offset:1024 lds", "qld")
    for it in g2_reads(12): it()
    for tau in range(1, 4):
        e(f"""
        s_add_u32 s24, s3, {tau}
        s_and_b32 s24, s24, 3
        s_mul_i32 s24, s24, 12288
        s_add_u32 s24, s24, {L_RED + (tau-1)*4096}
        v_add_u32 v{5+tau}, s24, v{VL16}
        """)
    g.wboth(["h11", "h12", "h13"], ["v11", "v13"])
    mf = []; fixed = {}
    for n, tau in enumerate((1, 2, 3, 0)):
        for p in (11, 13, 12):
            for i in range(4): mf.append(g2_mf(p, i, tau))
        if n == 0: fixed.setdefault(6, []).append(lambda: g.wds("v12"))
        if n >= 1:
            pt = (1, 2, 3)[n - 1]
            def wr(i, pt=pt):
                a = ACC2 + (i * 4 + pt) * 4
                return lambda: g.ds(f"ds_write_b128 v{5+pt}, v[{a}:{a+3}] offset:{1024*i}", "red")
            for i in range(4): fixed.setdefault(12 * n + 2 + 2 * i, []).append(wr(i))
    def addr():
        e(f"""
        s_mul_i32 s24, s3, 12288
        s_add_u32 s24, s24, {L_RED}
        v_add_u32 v9, s24, v{VL16}
        """)
    def addr2():
        e(f"""
        v_lshlrev_b32 v10, 7, v3
        v_lshl_add_u32 v10, v4, 3, v10
        s_add_u32 s24, s22, {L_QY - 65536}
        """)
    def addr3():
        e(f"""
        v_add_u32 v10, s24, v10
        v_lshrrev_b32 v11, 2, v1          ; 4q4 + r'
        v_lshlrev_b32 v11, 7, v11
        """)
    def addr4():
        e(f"""
        v_and_b32 v5, 3, v1
        v_lshl_add_u32 v11, v5, 3, v11
        s_lshl_b32 s24, s3, 5
        """)
    def addr5():
        e(f"""
        s_add_u32 s24, s24, {L_QY + 2048}
        v_add_u32 v11, s24, v11
        v_add_u32 v10, 0x10000, v10
        """)
    for k, f in enumerate((addr, addr2, addr3, addr4, addr5)): fixed.setdefault(1 + 2 * k, []).append(f)
    run_slots(mf, fixed)
    g.wvm("yld", "qld", "gld")
    g.wds_all()
    e("s_barrier")
    stamp(10)
    P0 = STG + 4
    QD = STG + 52
    YD = STG + 60
    T = STG + 68
    O = STG + 76
    GG = Y0
    for i in range(4):
        g.ds(f"ds_read_b64 v[{QD+2*i}:{QD+2*i+1}], v10 offset:{32*i}", f"eq{i}")
        g.ds(f"ds_read_b64_tr_b16 v[{YD+2*i}:{YD+2*i+1}], v11 offset:{4096*i}", f"eq{i}")
    for i in range(4):
        for tau in range(3):
            n = tau * 4 + i
            g.ds(f"ds_read_b128 v[{P0+4*n}:{P0+4*n+3}], v9 offset:{1024*n}", f"ep{i}")
    e(f"""
    v_sub_f32 v{GG+1}, 1.0, v{GG}
    v_cvt_pk_bf16_f32 v{GG+1}, v{GG+1}, v{GG+1}
    v_lshlrev_b32 v{GG+1}, 16, v{GG+1}      ; bf16(1-g)
    v_and_b32 v5, 1, v4
    v_lshrrev_b32 v6, 1, v4
    v_lshlrev_b32 v6, 4, v6
    v_lshl_add_u32 v6, v5, 5, v6
    v_lshl_add_u32 v6, v3, 10, v6
    """)
    AB = STG + 84
    for i in range(4):
        g.wds(f"eq{i}")
        qd, yd, r = QD + 2 * i, YD + 2 * i, AB + 4 * i
        e(f"""
        v_lshlrev_b32 v{r}, 16, v{qd}
        v_and_b32 v{r+1}, 0xffff0000, v{qd}
        v_lshlrev_b32 v{r+2}, 16, v{qd+1}
        v_and_b32 v{r+3}, 0xffff0000, v{qd+1}
        v_lshlrev_b32 v{T}, 16, v{yd}
        v_and_b32 v{T+1}, 0xffff0000, v{yd}
        v_lshlrev_b32 v{T+2}, 16, v{yd+1}
        v_and_b32 v{T+3}, 0xffff0000, v{yd+1}
        v_pk_mul_f32 v[{r}:{r+1}], v[{r}:{r+1}], v[{T}:{T+1}]
        v_pk_mul_f32 v[{r+2}:{r+3}], v[{r+2}:{r+3}], v[{T+2}:{T+3}]
        v_cvt_pk_bf16_f32 v{T}, v{r}, v{r+1}
        v_cvt_pk_bf16_f32 v{T+1}, v{r+2}, v{r+3}
        v_lshlrev_b32 v{r}, 16, v{T}
        v_and_b32 v{r+1}, 0xffff0000, v{T}
        v_lshlrev_b32 v{r+2}, 16, v{T+1}
        v_and_b32 v{r+3}, 0xffff0000, v{T+1}
        v_pk_mul_f32 v[{r}:{r+1}], v[{r}:{r+1}], v[{GG}:{GG+1}] op_sel_hi:[1,0]
        v_pk_mul_f32 v[{r+2}:{r+3}], v[{r+2}:{r+3}], v[{GG}:{GG+1}] op_sel_hi:[1,0]
        v_cvt_pk_bf16_f32 v{T}, v{r}, v{r+1}
        v_cvt_pk_bf16_f32 v{T+1}, v{r+2}, v{r+3}
        v_lshlrev_b32 v{r}, 16, v{T}
        v_and_b32 v{r+1}, 0xffff0000, v{T}
        v_lshlrev_b32 v{r+2}, 16, v{T+1}
        v_and_b32 v{r+3}, 0xffff0000, v{T+1}
        """)
    for i in range(4):
        a = ACC2 + (i * 4) * 4
        r = AB + 4 * i
        g.wds(f"ep{i}")
        p0, p1, p2 = [P0 + (tau * 4 + i) * 4 for tau in range(3)]
        e(f"""
        v_pk_add_f32 v[{a}:{a+1}], v[{a}:{a+1}], v[{p0}:{p0+1}]
        v_pk_add_f32 v[{a+2}:{a+3}], v[{a+2}:{a+3}], v[{p0+2}:{p0+3}]
        v_pk_add_f32 v[{p1}:{p1+1}], v[{p1}:{p1+1}], v[{p2}:{p2+1}]
        v_pk_add_f32 v[{p1+2}:{p1+3}], v[{p1+2}:{p1+3}], v[{p2+2}:{p2+3}]
        v_pk_add_f32 v[{a}:{a+1}], v[{a}:{a+1}], v[{p1}:{p1+1}]
        v_pk_add_f32 v[{a+2}:{a+3}], v[{a+2}:{a+3}], v[{p1+2}:{p1+3}]
        v_cvt_pk_bf16_f32 v{T}, v{a}, v{a+1}
        v_cvt_pk_bf16_f32 v{T+1}, v{a+2}, v{a+3}
        v_lshlrev_b32 v{a}, 16, v{T}
        v_and_b32 v{a+1}, 0xffff0000, v{T}
        v_lshlrev_b32 v{a+2}, 16, v{T+1}
        v_and_b32 v{a+3}, 0xffff0000, v{T+1}
        v_pk_mul_f32 v[{a}:{a+1}], v[{a}:{a+1}], v[{GG}:{GG+1}] op_sel:[0,1] op_sel_hi:[1,1]
        v_pk_mul_f32 v[{a+2}:{a+3}], v[{a+2}:{a+3}], v[{GG}:{GG+1}] op_sel:[0,1] op_sel_hi:[1,1]
        v_cvt_pk_bf16_f32 v{T}, v{a}, v{a+1}
        v_cvt_pk_bf16_f32 v{T+1}, v{a+2}, v{a+3}
        v_lshlrev_b32 v{a}, 16, v{T}
        v_and_b32 v{a+1}, 0xffff0000, v{T}
        v_lshlrev_b32 v{a+2}, 16, v{T+1}
        v_and_b32 v{a+3}, 0xffff0000, v{T+1}
        v_pk_add_f32 v[{r}:{r+1}], v[{r}:{r+1}], v[{a}:{a+1}]
        v_pk_add_f32 v[{r+2}:{r+3}], v[{r+2}:{r+3}], v[{a+2}:{a+3}]
        v_cvt_pk_bf16_f32 v{O+2*i}, v{r}, v{r+1}
        v_cvt_pk_bf16_f32 v{O+2*i+1}, v{r+2}, v{r+3}
        """)
        if i & 1:
            b = O + 2 * (i - 1)
            e("s_nop 1")
            e(f"v_permlane16_swap_b32 v{b}, v{b+2}")
            e(f"v_permlane16_swap_b32 v{b+1}, v{b+3}")
            g.vm(f"buffer_store_dwordx4 v[{b}:{b+3}], v6, {srd(S_OUT)}, s31 offen offset:{32*(i-1)}")

prologue()
p0_addr()
g1_setup()
e("s_waitcnt lgkmcnt(0)")
stamp(0)
e("s_lshl_b32 s38, s10, 2")
e("s_load_dword s39, s[40:41], s38")
e("s_or_b32 s12, s2, s3")
e("s_cmp_lg_u32 s12, 0")
e("s_cbranch_scc1 L_nononce")
e(f"""
s_or_b32 s43, s43, 0x40000000
v_mov_b32 v{VN}, s42
v_mov_b32 v{VN+1}, s43
v_mov_b32 v{VN+2}, 0
s_mov_b64 exec, 1
""")
e(f"buffer_store_dwordx2 v[{VN}:{VN+1}], v{VN+2}, {srd(S_DBG)}, 0 offen sc1")
e("s_mov_b64 exec, -1")
g.lab("L_nononce")
p0_loads()
stamp(16)
for it in g1_issue_items(0): it()
stamp(17)
g1_setup2()
p0_compute(g1_issue_items(1), g1_issue_items(2))
stamp(1)
Q = g1_issue_items(3) + g1_issue_items(4)
gemm1(Q)
stamp(2)
g1_epilogue(Q)
stamp(3)
conv_prep(Q)
stamp(5)
hl = conv(Q)
gemm2(hl)
if STAMPS:
    g.wvm_all()
    stamp(14)
g.lab("L_end")
e("s_endpgm")
g.lab("L_codeend")

body = "\n".join(g.L)
out = HEADER + f"""; Override launch geometry by editing the next line (default: block=256,
; grid=ceil(out_elems/256), lds=0). Harness parses it; keep it on one line.
; @launch grid=(256,1,1) block=(256,1,1) lds={LDS_TOTAL}
.amdgcn_target "amdgcn-amd-amdhsa--gfx950"
.text
.globl {KNAME}
.p2align 8
.type {KNAME},@function
{KNAME}:
{body}
.section .rodata,"a"
.p2align 6
.amdhsa_kernel {KNAME}
  .amdhsa_next_free_vgpr 512
  .amdhsa_next_free_sgpr 102
  .amdhsa_accum_offset 256
  .amdhsa_group_segment_fixed_size 0
  .amdhsa_kernarg_size 104
  .amdhsa_user_sgpr_count 2
  .amdhsa_user_sgpr_kernarg_segment_ptr 1
  .amdhsa_system_sgpr_workgroup_id_x 1
.end_amdhsa_kernel
"""
dst = sys.argv[1] if len(sys.argv) > 1 else "gated_mix__ssm_conv_h3__dense_activation_silu__prompt.s"
open(dst, "w").write(out)
print("wrote", dst, len(out), "bytes", len(g.L), "lines")
```

```python
import sys, os

KNAME = "gated_mix__ssm_conv_h3__dense_activation_silu__prompt_kernel"
HEADER = open("gated_mix__ssm_conv_h3__dense_activation_silu__prompt.s.ref").read().split("; Override launch")[0]
STAMPS = bool(os.environ.get('STAMPS'))
def ENV(n, d): return int(os.environ.get(n, d))

WS_KVR = 0
WS_HF  = 2 << 20
WS_Y2  = 10 << 20
WS_G   = 12 << 20
WS_MB  = (12 << 20) + 65536
MB_KV = WS_MB
MB_H  = WS_MB + 4096
MB_Y  = WS_MB + 16384
WS_STAMP = 13 << 20
WS_SIZE = 256 << 20

SLOT = 32768
NSLOT = 5
WG_ = [147456, 0, 16384, 32768, 49152, 65536, 81920]
L_TOEP = 98304
TP = 4160
L_UR = L_TOEP + 2 * 4 * TP
URP = 5120
LDS_TOTAL = 163840
L_CRED = L_TOEP
L_RED = L_TOEP
L_QY = WG_[0]

class G:
    def __init__(self):
        self.L = []
        self.nlab = 0
        self.vmq = []; self.vmdone = 0
        self.dsq = []; self.dsdone = 0
        self.side = []; self.side_every = 0; self.side_cnt = 0; self.in_side = False
    def e(self, s):
        for line in s.strip("\n").split("\n"):
            if line.strip():
                self.L.append("    " + line.strip())
                if self.side_every and not self.in_side and line.strip().startswith("v_"):
                    self.side_cnt += 1
                    if self.side_cnt % self.side_every == 0 and self.side:
                        self.in_side = True
                        self.side.pop(0)()
                        self.in_side = False
    def side_on(self, q, every):
        self.side = q; self.side_every = every; self.side_cnt = 0
    def side_off(self, flush=False):
        self.side_every = 0
        if flush:
            while self.side: self.side.pop(0)()
        self.side = []
    def c(self, s):
        self.L.append("    ; " + s)
    def lab(self, l):
        self.L.append(l + ":")
    def newlab(self, p="L"):
        self.nlab += 1
        return f"{p}_{self.nlab}"
    def vm(self, s, tag=None):
        self.e(s); self.vmq.append(tag)
    def ds(self, s, tag=None):
        self.e(s); self.dsq.append(tag)
    def _need(self, q, done, tags, cap):
        idx = -1
        for t in tags:
            pos = [i for i, x in enumerate(q) if x == t]
            assert pos, f"tag {t} not issued"
            idx = max(idx, pos[-1])
        if idx + 1 <= done: return None, done
        n = len(q) - 1 - idx
        if n > cap: n = cap
        return n, len(q) - n
    def wvm(self, *tags):
        n, self.vmdone = self._need(self.vmq, self.vmdone, tags, 63)
        if n is not None: self.e(f"s_waitcnt vmcnt({n})")
    def wds(self, *tags):
        n, self.dsdone = self._need(self.dsq, self.dsdone, tags, 15)
        if n is not None: self.e(f"s_waitcnt lgkmcnt({n})")
    def wboth(self, vtags, dtags):
        n, self.vmdone = self._need(self.vmq, self.vmdone, vtags, 63) if vtags else (None, self.vmdone)
        m, self.dsdone = self._need(self.dsq, self.dsdone, dtags, 15) if dtags else (None, self.dsdone)
        s = []
        if n is not None: s.append(f"vmcnt({n})")
        if m is not None: s.append(f"lgkmcnt({m})")
        if s: self.e("s_waitcnt " + " ".join(s))
    def wvm_all(self):
        self.e("s_waitcnt vmcnt(0)"); self.vmdone = len(self.vmq)
    def wds_all(self):
        self.e("s_waitcnt lgkmcnt(0)"); self.dsdone = len(self.dsq)

g = G()
e = g.e

S_Q, S_K, S_V, S_SSMK, S_W1, S_W2, S_OUT, S_DBG, S_WS, S_SK, S_GW = [44 + 4 * i for i in range(11)]
def srd(b): return f"s[{b}:{b+3}]"

ACC1 = 20
XF = [76, 84]
WF = [92, 120]
VX = 148
VW1S = 152
VXR = 156
VW1R = 162
STG = 76
SSM = 188
ZR = SSM + 12
VL16 = 206
VW2 = 207
VTD = 211
VW2R = 216
VH = 228
VH8 = 232
VN = 240
CACC = 20
ACC2 = 12

def stamp(i):
    if not STAMPS: return
    e("s_memrealtime s[98:99]")
    e("s_memtime s[100:101]")
    g.wds_all()
    e("v_mov_b32 v254, s98")
    e("v_mov_b32 v255, s100")
    e("s_lshl_b32 s98, s2, 2")
    e("s_add_u32 s98, s98, s3")
    e("s_lshl_b32 s98, s98, 8")
    e(f"s_add_u32 s98, s98, {WS_STAMP + 8*i}")
    e("v_mov_b32 v253, 0")
    e("s_mov_b64 exec, 1")
    g.vm(f"buffer_store_dwordx2 v[254:255], v253, {srd(S_WS)}, s98 offen")
    e("s_mov_b64 exec, -1")

def run_slots(mf, fixed, q=None, cap=2, qstart=0, pace=1):
    last = -10**9
    for j, m in enumerate(mf):
        m()
        fx = fixed.get(j, [])
        for f in fx: f()
        n = len(fx)
        while q and n < cap and j >= qstart and j - last >= pace:
            it = q.pop(0)
            it(); n += 1
            if not getattr(it, "light", False):
                last = j
                if pace > 0: break

def light(f):
    f.light = True
    return f

def place(fixed, items, start, per):
    j = start
    items = list(items)
    while items:
        for _ in range(per):
            if items: fixed.setdefault(j, []).append(items.pop(0))
        j += 1

def prologue():
    e("s_cmp_ge_u32 s2, 256")
    e("s_cbranch_scc1 L_end")
    for (b, off) in ((S_K, 8), (S_V, 16), (S_Q, 0), (S_W1, 56), (S_SK, 24), (S_GW, 72), (S_DBG, 88), (S_WS, 96), (S_SSMK, 32), (S_W2, 64), (S_OUT, 80)):
        e(f"s_load_dwordx2 s[{b}:{b+1}], s[0:1], {off}")
    e("s_load_dwordx2 s[40:41], s[0:1], 40")
    e("s_memrealtime s[42:43]")
    e("""
    v_and_b32 v1, 63, v0          ; lane
    v_lshrrev_b32 v2, 6, v0       ; wave
    s_and_b32 s4, s2, 7           ; xcd
    s_lshr_b32 s5, s2, 3          ; idx
    v_readfirstlane_b32 s3, v2
    """)
    e(f"""
    s_getpc_b64 s[12:13]
L_pc:
    s_lshl_b32 s14, s5, 2
    s_add_u32 s14, s14, s3
    s_lshl_b32 s14, s14, 10
    s_cmp_lt_u32 s14, (L_codeend - L_pc - 1024)
    s_cselect_b32 s14, s14, 0
    v_lshlrev_b32 v{VL16}, 4, v1
    v_add_u32 v5, s14, v{VL16}
    """)
    g.vm("global_load_dwordx4 v[248:251], v5, s[12:13]", "codepf")
    for (b, n) in ((S_Q, 2 << 20), (S_K, 2 << 20), (S_V, 2 << 20), (S_SK, 4096), (S_SSMK, 2 << 20), (S_W1, 1835008), (S_W2, 1835008), (S_GW, 1024), (S_OUT, 2 << 20), (S_DBG, 256), (S_WS, WS_SIZE)):
        e(f"s_mov_b32 s{b+2}, {n}")
        e(f"s_mov_b32 s{b+3}, 0x00020000")
    e("""
    s_lshr_b32 s6, s4, 1
    s_lshl_b32 s6, s6, 2
    s_and_b32 s7, s5, 3
    s_add_u32 s6, s6, s7
    s_and_b32 s7, s4, 1
    s_lshl_b32 s7, s7, 3
    s_lshr_b32 s8, s5, 2
    s_add_u32 s7, s7, s8
    s_lshl_b32 s8, s4, 2
    s_and_b32 s9, s5, 3
    s_add_u32 s8, s8, s9
    s_lshr_b32 s9, s5, 2
    s_lshl_b32 s10, s4, 5
    s_add_u32 s10, s10, s5
    v_and_b32 v3, 15, v1          ; l&15
    v_lshrrev_b32 v4, 4, v1       ; q = l>>4
    s_lshl_b32 s22, s3, 12        ; wave*4096
    s_lshr_b32 s32, s3, 1             ; ch
    s_and_b32 s33, s3, 1
    s_lshl_b32 s34, s10, 1
    s_add_u32 s34, s34, s32           ; d
    s_lshl_b32 s35, s34, 12           ; d*4096
    s_lshl_b32 s36, s33, 11           ; half*2048
    s_add_u32 s37, s35, s36
    """)

def p0_addr():
    e(f"""
    v_and_b32 v10, 31, v1             ; p
    v_lshrrev_b32 v11, 5, v1
    v_lshl_add_u32 v11, v2, 1, v11    ; rg = 2w + (l>>5)
    s_lshl_b32 s12, s5, 6
    v_lshl_add_u32 v11, v11, 3, s12
    s_add_u32 s11, s4, s5
    s_and_b32 s11, s11, 7
    s_lshl_b32 s13, s11, 7
    v_lshl_add_u32 v12, v10, 2, s13
    v_lshl_add_u32 v13, v11, 10, v12  ; voff0
    v_subrev_u32 v14, 3072, v13       ; voffn
    v_mov_b32 v15, 0x80000000
    v_cmp_eq_u32 vcc, 0, v11
    s_mov_b32 s14, 4096
    s_lshl_b32 s15, s6, 7
    v_cndmask_b32 v14, v14, v15, vcc
    v_lshlrev_b32 v15, 2, v12
    s_lshl_b32 s16, s7, 3
    s_add_u32 s15, s15, s16
    s_lshl_b32 s16, s3, 1
    s_add_u32 s15, s15, s16
    s_lshl_b32 s16, s15, 10
    """)
def p0_loads():
    for j in range(3):
        g.vm(f"buffer_load_dword v{20+j}, v14, {srd(S_K)}, 0 offen offset:{1024*j}", "p0")
    for j in range(8):
        so = "0" if j < 4 else "s14"
        g.vm(f"buffer_load_dword v{23+j}, v13, {srd(S_K)}, {so} offen offset:{1024*(j&3)}", "p0")
    for j in range(8):
        so = "0" if j < 4 else "s14"
        g.vm(f"buffer_load_dword v{32+j}, v13, {srd(S_V)}, {so} offen offset:{1024*(j&3)}", "p0")
    g.vm(f"buffer_load_dwordx4 v[40:43], v15, {srd(S_SK)}, 0 offen", "p0")
    g.vm(f"buffer_load_dwordx4 v[44:47], v{VL16}, {srd(S_Q)}, s16 offen", "p0g")
    g.vm(f"buffer_load_dwordx4 v[48:51], v{VL16}, {srd(S_Q)}, s16 offen offset:1024", "p0g")
    g.vm(f"buffer_load_dwordx4 v[52:55], v{VL16}, {srd(S_GW)}, 0 offen", "p0g")

def p0_compute(q1, q2):
    g.c("---- phase 0 compute")
    g.wvm("p0")
    stamp(18)
    g.side_on(q1, 6)
    for i in range(11):
        e(f"v_lshlrev_b32 v{60+2*i}, 16, v{20+i}")
        e(f"v_and_b32 v{61+2*i}, 0xffff0000, v{20+i}")
    for j in range(8):
        e(f"v_lshlrev_b32 v{84+2*j}, 16, v{32+j}")
        e(f"v_and_b32 v{85+2*j}, 0xffff0000, v{32+j}")
    e("""
    v_lshlrev_b32 v100, 16, v40
    v_lshlrev_b32 v101, 16, v42
    v_and_b32 v102, 0xffff0000, v40
    v_and_b32 v103, 0xffff0000, v42
    v_lshlrev_b32 v104, 16, v41
    v_lshlrev_b32 v105, 16, v43
    v_and_b32 v106, 0xffff0000, v41
    v_and_b32 v107, 0xffff0000, v43
    """)
    def K(i): return f"v[{60+2*i}:{61+2*i}]"
    def S(i): return f"v[{100+2*i}:{101+2*i}]"
    def A(j): return f"v[{110+2*j}:{111+2*j}]"
    for j in range(8): e(f"v_pk_mul_f32 {A(j)}, {K(j)}, {S(3)}")
    for j in range(8): e(f"v_pk_fma_f32 {A(j)}, {K(j+1)}, {S(2)}, {A(j)}")
    for j in range(8): e(f"v_pk_fma_f32 {A(j)}, {K(j+2)}, {S(1)}, {A(j)}")
    for j in range(8): e(f"v_pk_fma_f32 {A(j)}, {K(j+3)}, {S(0)}, {A(j)}")
    for j in range(8): e(f"v_pk_mul_f32 {A(j)}, {A(j)}, v[{84+2*j}:{85+2*j}]")
    for ch in range(2):
        for m in range(4):
            e(f"v_cvt_pk_bf16_f32 v{128+4*ch+m}, v{110+2*(7-2*m)+ch}, v{110+2*(6-2*m)+ch}")
    e(f"""
    v_lshlrev_b32 v17, 11, v12
    v_lshlrev_b32 v18, 1, v11
    v_sub_u32 v17, v17, v18
    v_add_u32 v17, {WS_KVR + 4080}, v17
    """)
    g.side_off(flush=True)
    g.vm(f"buffer_store_dwordx4 v[128:131], v17, {srd(S_WS)}, 0 offen sc1", "kvst")
    g.vm(f"buffer_store_dwordx4 v[132:135], v17, {srd(S_WS)}, s14 offen sc1", "kvst")
    e(f"v_mov_b32 v{VN+2}, 0")
    g.vm(f"buffer_load_dwordx2 v[{VN}:{VN+1}], v{VN+2}, {srd(S_DBG)}, 0 offen sc1", "nonce")
    stamp(19)
    g.wvm("p0g")
    g.side_on(q2, 5)
    for i in range(4):
        e(f"v_lshlrev_b32 v{60+2*i}, 16, v{52+i}")
        e(f"v_and_b32 v{61+2*i}, 0xffff0000, v{52+i}")
    for r in range(2):
        b = 70 + 10 * r
        for i in range(4):
            e(f"v_lshlrev_b32 v{b+2*i}, 16, v{44+4*r+i}")
            e(f"v_and_b32 v{b+2*i+1}, 0xffff0000, v{44+4*r+i}")
        for i in range(4):
            e(f"v_pk_mul_f32 v[{b+2*i}:{b+2*i+1}], v[{b+2*i}:{b+2*i+1}], v[{60+2*i}:{61+2*i}]")
        for i in range(4):
            e(f"v_cvt_pk_bf16_f32 v{90+i}, v{b+2*i}, v{b+2*i+1}")
        for i in range(4):
            e(f"v_lshlrev_b32 v{b+2*i}, 16, v{90+i}")
            e(f"v_and_b32 v{b+2*i+1}, 0xffff0000, v{90+i}")
        e(f"v_pk_add_f32 v[{b}:{b+1}], v[{b}:{b+1}], v[{b+2}:{b+3}]")
        e(f"v_pk_add_f32 v[{b+4}:{b+5}], v[{b+4}:{b+5}], v[{b+6}:{b+7}]")
        e(f"v_pk_add_f32 v[{b}:{b+1}], v[{b}:{b+1}], v[{b+4}:{b+5}]")
        e(f"v_add_f32 v{96+r}, v{b}, v{b+1}")
    g.side_off(flush=True)
    e("s_nop 0")
    for ctl in ("row_shr:1 row_mask:0xf bank_mask:0xf bound_ctrl:0", "row_shr:2 row_mask:0xf bank_mask:0xf bound_ctrl:0",
                "row_shr:4 row_mask:0xf bank_mask:0xf bound_ctrl:0", "row_shr:8 row_mask:0xf bank_mask:0xf bound_ctrl:0",
                "row_bcast:15 row_mask:0xa bank_mask:0xf", "row_bcast:31 row_mask:0xc bank_mask:0xf"):
        e(f"v_add_f32_dpp v96, v96, v96 {ctl}")
        e(f"v_add_f32_dpp v97, v97, v97 {ctl}")
        e("s_nop 0")
    e(f"""
    s_nop 0
    v_readlane_b32 s16, v96, 63
    v_readlane_b32 s17, v97, 63
    v_cmp_eq_u32 vcc, 1, v1
    v_mov_b32 v96, s16
    v_mov_b32 v98, s17
    v_cndmask_b32 v96, v96, v98, vcc
    v_cvt_pk_bf16_f32 v96, v96, v96
    v_lshlrev_b32 v96, 16, v96
    v_mul_f32 v96, 0xbfb8aa3b, v96    ; -log2e * x
    v_exp_f32 v96, v96
    s_lshl_b32 s16, s15, 2
    v_add_f32 v96, 1.0, v96
    v_rcp_f32 v96, v96
    s_add_u32 s16, s16, {WS_G}
    v_cvt_pk_bf16_f32 v96, v96, v96
    v_lshlrev_b32 v96, 16, v96
    v_lshlrev_b32 v97, 2, v1
    s_mov_b64 exec, 3
    """)
    g.vm(f"buffer_store_dword v96, v97, {srd(S_WS)}, s16 offen sc1", "gst")
    e("s_mov_b64 exec, -1")

PH = ENV('PH', 8)
ROT = {8: """s_lshr_b32 s24, s5, 2
    s_and_b32 s27, s5, 3
    s_lshl_b32 s27, s27, 1
    s_add_u32 s24, s24, s27""",
       4: """s_lshr_b32 s24, s5, 2
    s_add_u32 s24, s24, s5
    s_lshl_b32 s24, s24, 1""",
       2: """s_lshr_b32 s24, s5, 2
    s_add_u32 s24, s24, s5
    s_lshl_b32 s24, s24, 2""",
       1: "s_mov_b32 s24, 0"}[PH]
def g1_setup():
    e(f"""
    v_lshrrev_b32 v5, 3, v1
    v_and_b32 v6, 7, v1
    v_lshrrev_b32 v7, 1, v5
    v_xor_b32 v7, v7, v6
    v_xor_b32 v8, 4, v7
    v_lshlrev_b32 v5, 10, v5
    v_lshl_add_u32 v5, v2, 15, v5
    s_lshl_b32 s20, s6, 17
    v_add_u32 v5, s20, v5
    v_lshl_add_u32 v{VX}, v7, 4, v5
    v_lshl_add_u32 v{VX+1}, v8, 4, v5
    v_add_u32 v{VX+2}, {0x4000 - 2048}, v{VX}
    v_add_u32 v{VX+3}, {0x6000 - 3072}, v{VX+1}
    v_add_u32 v{VX+1}, {0x2000 - 1024}, v{VX+1}
    s_mul_i32 s21, s7, 224
    """)
    for k, (nb, imm) in enumerate(((0, 0), (1, 1024), (8, 0), (9, 1024))):
        d = VW1S + k
        e(f"""
        v_lshl_add_u32 v5, v2, 7, v1
        v_add_u32 v5, {64*nb}, v5          ; G
        v_mul_u32_u24 v6, 4682, v5
        v_lshrrev_b32 v6, 16, v6           ; R
        v_mul_u32_u24 v7, 14, v6
        v_sub_u32 v7, v5, v7               ; gq
        v_bfe_u32 v8, v6, 2, 1
        v_bfe_u32 v9, v6, 3, 1
        v_and_b32 v6, 0x73, v6
        v_lshl_add_u32 v6, v8, 3, v6
        v_lshl_add_u32 v6, v9, 2, v6
        v_mul_u32_u24 v6, 3584, v6
        v_lshl_add_u32 v6, v7, 4, v6
        v_add_u32 v6, s21, v6
        v_subrev_u32 v{d}, {imm}, v6
        """)
        if nb >= 8:
            e(f"""
            v_mov_b32 v7, 0x80000000
            v_cmp_le_u32 vcc, 896, v5
            v_cndmask_b32 v{d}, v{d}, v7, vcc
            """)
    e(f"""
    s_lshl_b32 s23, s3, 11
    s_add_u32 s23, s23, 16384         ; w1 lds: 16384 + 2w*1024
    {ROT}
    s_add_u32 s24, s24, 7
    s_and_b32 s24, s24, 7
    s_lshl_b32 s27, s24, 7
    """)
def g1_setup2():
    e(f"""
    v_lshrrev_b32 v5, 1, v3           ; t>>1
    v_xor_b32 v5, v5, v4              ; q ^ (t>>1)
    v_lshlrev_b32 v5, 4, v5
    v_lshl_add_u32 v5, v3, 7, v5      ; t*128 + ..
    v_lshl_add_u32 v{VXR}, v2, 12, v5
    v_xor_b32 v{VXR+3}, 64, v{VXR}
    v_add_u32 v{VXR+1}, 0x10000, v{VXR}
    v_add_u32 v{VXR+2}, 0x20000, v{VXR}
    v_add_u32 v{VXR+4}, 0x10000, v{VXR+3}
    v_add_u32 v{VXR+5}, 0x20000, v{VXR+3}
    v_lshrrev_b32 v5, 1, v4           ; q>>1
    v_and_b32 v6, 1, v4
    v_lshl_add_u32 v5, v5, 2, v6      ; 4(q>>1)+(q&1)
    v_mul_u32_u24 v5, 896, v5
    v_bfe_u32 v6, v1, 2, 2            ; r
    v_mul_u32_u24 v6, 224, v6
    v_add_u32 v5, v5, v6
    v_and_b32 v6, 3, v1
    v_lshl_add_u32 v{VW1R}, v6, 3, v5
    v_add_u32 v{VW1R}, 16384, v{VW1R}
    v_add_u32 v{VW1R+1}, 0x10000, v{VW1R}
    v_add_u32 v{VW1R+2}, 0x20000, v{VW1R}
    """)
    e(f"""
    v_lshrrev_b32 v5, 3, v1           ; e
    v_bfe_u32 v6, v1, 1, 2            ; pospair
    v_and_b32 v7, 1, v1               ; half
    v_bfe_u32 v8, v5, 1, 1            ; (e>>1)&1
    v_xor_b32 v6, v6, v8
    v_xor_b32 v8, 2, v6
    v_and_b32 v9, 3, v5
    v_lshrrev_b32 v5, 2, v5           ; e>>2
    v_lshl_add_u32 v9, v5, 4, v9      ; (e&3) + 16(e>>2)
    v_lshlrev_b32 v9, 10, v9
    v_lshl_add_u32 v9, v7, 4, v9
    s_mul_i32 s30, s3, {448*1024}
    s_lshl_b32 s31, s9, 7
    s_add_u32 s30, s30, s31
    v_add_u32 v9, s30, v9
    v_lshl_add_u32 v{VW2}, v6, 5, v9
    v_lshl_add_u32 v{VW2+1}, v8, 5, v9
    v_add_u32 v{VW2+2}, {8192 - 2048}, v{VW2}
    v_add_u32 v{VW2+3}, {12288 - 3072}, v{VW2+1}
    v_add_u32 v{VW2+1}, {4096 - 1024}, v{VW2+1}
    v_mul_u32_u24 v{VTD+3}, {96*1024}, v5
    s_and_b32 s24, s5, 3
    s_lshr_b32 s25, s5, 2
    s_add_u32 s24, s24, s25
    s_add_u32 s24, s24, s4
    """)
    for jp in range(4):
        e(f"""
        s_add_u32 s25, s24, {jp}
        s_and_b32 s25, s25, 3
        s_mul_i32 s{94+jp}, s25, {112*1024}
        """)

def g1_issue_items(c):
    slot = c % NSLOT
    it = []
    it.append(light(lambda: e("s_add_u32 s27, s27, 128")))
    it.append(light(lambda: e("s_and_b32 s27, s27, 1023")))
    it.append(light(lambda: e("s_mul_i32 s29, s27, 1792")))
    it.append(light(lambda: e(f"s_add_u32 m0, s23, {slot*SLOT}")))
    def w(k): return lambda: g.vm(f"buffer_load_dwordx4 v{VW1S+k}, {srd(S_W1)}, s29 offen offset:{1024*(k&1)} lds", f"c{c}")
    def x(j): return lambda: g.vm(f"buffer_load_dwordx4 v{VX+j}, {srd(S_Q)}, s27 offen offset:{1024*j} lds", f"c{c}")
    it += [M0GAP, w(0), w(1), light(lambda: e(f"s_add_u32 m0, s23, {slot*SLOT + 8192}")), M0GAP, w(2), w(3),
           light(lambda: e(f"s_add_u32 m0, s22, {slot*SLOT}")), M0GAP, x(0), x(1), x(2), x(3)]
    return it
def _m0gap():
    if " m0," in g.L[-1]: e("s_nop 0")
M0GAP = light(_m0gap)

def w2_soff(p):
    if p < 12: return f"s{94 + p // 3}", (p % 3) * 32 * 1024
    return None, (96 + 224 * (p - 12)) * 1024
def w2_issue_items(p):
    assert p < 12
    sr, ex = w2_soff(p)
    it = [light(lambda: e(f"s_add_u32 s26, {sr}, {ex}")), light(lambda: e(f"s_add_u32 m0, s22, {WG_[p % 7]}")), M0GAP]
    def d(jj): return lambda: g.vm(f"buffer_load_dwordx4 v{VW2+jj}, {srd(S_W2)}, s26 offen offset:{1024*jj} lds", f"w2_{p}")
    return it + [d(jj) for jj in range(4)]
def w2_stage_items(p):
    sr, ex = w2_soff(p)
    b = STG + 16 * (p - 7)
    it = []
    if p < 12:
        it.append(light(lambda: e(f"s_add_u32 s26, {sr}, {ex}")))
        va = [VW2 + jj for jj in range(4)]
    else:
        it.append(light(lambda: e(f"s_mov_b32 s26, {ex}")))
        va = [VW2C + jj for jj in range(4)]
    def d(jj): return lambda: g.vm(f"buffer_load_dwordx4 v[{b+4*jj}:{b+4*jj+3}], v{va[jj]}, {srd(S_W2)}, s26 offen offset:{1024*jj}", f"w2_{p}")
    return it + [d(jj) for jj in range(4)]
VW2C = 236

def g1_reads(s):
    c, kk = s // 2, s % 2
    slot = c % NSLOT
    rng, so = slot >> 1, (slot & 1) * SLOT
    b = s & 1
    def xr(tt):
        return lambda: g.ds(f"ds_read_b128 v[{XF[b]+4*tt}:{XF[b]+4*tt+3}], v{VXR+3*kk+rng} offset:{so+2048*tt}", f"a{s}")
    def wr(i, hh):
        return lambda: g.ds(f"ds_read_b64_tr_b16 v[{WF[b]+4*i+2*hh}:{WF[b]+4*i+2*hh+1}], v{VW1R+rng} offset:{so+kk*7168+hh*1792+32*i}", f"a{s}" if i < 3 else f"b{s}")
    return [xr(0), xr(1)] + [wr(i, hh) for i in range(7) for hh in range(2)]
def g1_mfmas(s):
    b = s & 1
    def mf(i, tt):
        def f():
            a = ACC1 + (tt * 7 + i) * 4
            c_ = f"v[{a}:{a+3}]" if s > 0 else "0"
            e(f"v_mfma_f32_16x16x32_bf16 v[{a}:{a+3}], v[{WF[b]+4*i}:{WF[b]+4*i+3}], v[{XF[b]+4*tt}:{XF[b]+4*tt+3}], {c_}")
        return f
    return [mf(i, tt) for i in range(7) for tt in range(2)]

def flag_store(saddr_lines, sreg, tag):
    e(saddr_lines)
    e("v_mov_b32 v252, s88")
    e("v_mov_b32 v253, s89")
    e("s_mov_b64 exec, 1")
    if tag: g.vm(f"buffer_store_dwordx2 v[252:253], v{VN+2}, {srd(S_WS)}, {sreg} offen sc1", tag)
    else: e(f"buffer_store_dwordx2 v[252:253], v{VN+2}, {srd(S_WS)}, {sreg} offen sc1")
    e("s_mov_b64 exec, -1")

def poll_issue(sreg, nlanes, tag):
    e("v_lshlrev_b32 v250, 3, v1")
    if nlanes < 64:
        e(f"v_and_b32 v250, {nlanes*8-1}, v250")
    g.vm(f"buffer_load_dwordx2 v[246:247], v250, {srd(S_WS)}, {sreg} offen sc1", tag)
def poll_check(sreg, tag):
    lab = g.newlab("L_poll"); done = g.newlab("L_pdone")
    g.wvm(tag)
    e("v_cmp_ne_u64 vcc, s[88:89], v[246:247]")
    e("s_mov_b32 s90, 0")
    e(f"s_cbranch_vccz {done}")
    g.lab(lab)
    e("s_sleep 1")
    e(f"buffer_load_dwordx2 v[246:247], v250, {srd(S_WS)}, {sreg} offen sc1")
    e("s_waitcnt vmcnt(0)")
    e("v_cmp_ne_u64 vcc, s[88:89], v[246:247]")
    e("s_add_u32 s90, s90, 1")
    e("s_cmp_lt_u32 s90, 0x4000")
    e(f"s_cbranch_scc0 {done}")
    e(f"s_cbranch_vccnz {lab}")
    g.lab(done)
def nonce_check():
    lab = g.newlab("L_npoll"); done = g.newlab("L_ndone")
    e(f"v_readfirstlane_b32 s89, v{VN+1}")
    e("s_mov_b32 s90, 0")
    e("s_cmp_lg_u32 s89, 0")
    e(f"s_cbranch_scc1 {done}")
    g.lab(lab)
    e("s_sleep 1")
    e(f"buffer_load_dwordx2 v[{VN}:{VN+1}], v{VN+2}, {srd(S_DBG)}, 0 offen sc1")
    e("s_waitcnt vmcnt(0)")
    e(f"v_readfirstlane_b32 s89, v{VN+1}")
    e("s_add_u32 s90, s90, 1")
    e("s_cmp_lt_u32 s90, 0x4000")
    e(f"s_cbranch_scc0 {done}")
    e("s_cmp_eq_u32 s89, 0")
    e(f"s_cbranch_scc1 {lab}")
    g.lab(done)
    e(f"v_readfirstlane_b32 s88, v{VN}")
    e("s_nop 3")
    e("s_mul_i32 s100, s88, 0x9e3779b1")
    e("s_lshr_b32 s100, s100, 28")
    e("s_lshl_b32 s100, s100, 24")

def toep_items(part):
    it = []
    for s_ in part:
        it.append(light(lambda s_=s_: e(f"s_add_u32 m0, s17, {s_*TP + 32}")))
        it.append(light(lambda s_=s_: e(f"s_add_u32 s26, s37, {2*s_}")))
        for hh in range(2):
            it.append(lambda hh=hh: g.vm(f"buffer_load_dwordx4 v{VL16}, {srd(S_SSMK)}, s26 offen offset:{1024*hh} lds", "toep"))
    return it

def ssm_items():
    return [lambda: g.vm(f"buffer_load_dwordx4 v[{SSM}:{SSM+3}], v{VL16}, {srd(S_SSMK)}, s37 offen", "ssm"),
            lambda: g.vm(f"buffer_load_dwordx2 v[{SSM+4}:{SSM+5}], v{VL16}, {srd(S_SSMK)}, s37 offen offset:16", "ssm"),
            lambda: g.vm(f"buffer_load_dwordx4 v[{SSM+6}:{SSM+9}], v{VL16}, {srd(S_SSMK)}, s37 offen offset:1024", "ssm"),
            lambda: g.vm(f"buffer_load_dwordx2 v[{SSM+10}:{SSM+11}], v{VL16}, {srd(S_SSMK)}, s37 offen offset:1040", "ssm"),
            lambda: g.vm(f"buffer_load_dwordx2 v[{SSM+16}:{SSM+17}], v{VN+2}, {srd(S_SSMK)}, s35 offen", "ssm")]
def touch_items():
    if ENV('NOTOUCH', 0): return []
    return [lambda: g.vm(f"buffer_load_dword v248, v{VTD+1}, {srd(S_W2)}, 0 offen", "touch"),
            lambda: g.vm(f"buffer_load_dword v249, v{VTD+2}, {srd(S_W2)}, 0 offen", "touch")]
PACE1 = ENV('PACE1', 2)
def gemm1(q):
    g.c("---- GEMM1")
    e(f"""
    s_mul_i32 s16, s32, {4*TP}
    s_add_u32 s16, s16, {L_TOEP}
    s_add_u32 s17, s16, s36
    s_lshl_b32 s24, s5, 2
    s_add_u32 s24, s24, s3
    s_mul_i32 s24, s24, {112*128}
    v_lshlrev_b32 v{VTD}, 7, v1
    v_add_u32 v{VTD+1}, s24, v{VTD}
    v_mov_b32 v5, 0x80000000
    v_cmp_gt_u32 vcc, 48, v1
    v_add_u32 v{VTD+2}, 8192, v{VTD+1}
    v_cndmask_b32 v{VTD+2}, v5, v{VTD+2}, vcc
    v_cmp_gt_u32 vcc, 16, v1
    v_cndmask_b32 v{VTD}, v5, v{VTD}, vcc
    """)
    g.wvm("c0")
    g.wds_all()
    e("s_barrier")
    for it in g1_reads(0): it()
    for s in range(16):
        c = s // 2
        if s % 2 == 0: stamp(21 + s // 2)
        fixed = {}
        if s % 2 == 1 and c + 1 < 8:
            assert g.vmq.count(f"c{c+1}") == 8, (c, g.vmq.count(f"c{c+1}"))
            vt = [f"c{c+1}"]
            if c + 1 == 3: vt += ["kvst", "nonce"]
            if c + 1 == 4: vt += ["gst"]
            g.wboth(vt, [f"a{s}", f"b{s}"])
            if c + 1 == 3: nonce_check()
            e("s_barrier")
            if c + 1 == 3:
                lab = g.newlab("L_kvsig")
                e("s_cmp_lg_u32 s3, 0")
                e(f"s_cbranch_scc1 {lab}")
                flag_store(f"""
                s_lshl_b32 s91, s11, 8
                s_lshl_b32 s92, s5, 3
                s_add_u32 s91, s91, s92
                s_add_u32 s91, s91, {MB_KV}
                """, "s91", None)
                g.lab(lab)
            if c <= 2: q.extend(g1_issue_items(c + 5))
            if c == 2: q.extend(ssm_items() + touch_items())
        else:
            g.wds(f"a{s}")
            fixed.setdefault(4, []).append(lambda s=s: g.wds(f"b{s}"))
        if s == 12:
            def pk():
                e(f"s_lshl_b32 s93, s4, 8")
                e(f"s_add_u32 s93, s93, {MB_KV}")
                poll_issue("s93", 32, "pollkv")
            fixed.setdefault(10, []).append(pk)
        if s + 1 < 16: place(fixed, g1_reads(s + 1), 0, 2)
        run_slots(g1_mfmas(s), fixed, q, cap=2, pace=PACE1 if s + 1 < 16 else 2, qstart=8 if s + 1 < 16 else 0)

T0 = 216
def silu_tile(a, dst):
    t = T0
    e(f"""
    v_cvt_pk_bf16_f32 v{t+4}, v{a}, v{a+1}
    v_cvt_pk_bf16_f32 v{t+5}, v{a+2}, v{a+3}
    v_lshlrev_b32 v{t+6}, 16, v{t+4}
    v_and_b32 v{t+7}, 0xffff0000, v{t+4}
    v_lshlrev_b32 v{t+8}, 16, v{t+5}
    v_and_b32 v{t+9}, 0xffff0000, v{t+5}
    v_pk_mul_f32 v[{t}:{t+1}], v[{t+6}:{t+7}], s[12:13]
    v_pk_mul_f32 v[{t+2}:{t+3}], v[{t+8}:{t+9}], s[12:13]
    v_exp_f32 v{t}, v{t}
    v_exp_f32 v{t+1}, v{t+1}
    v_exp_f32 v{t+2}, v{t+2}
    v_exp_f32 v{t+3}, v{t+3}
    v_pk_add_f32 v[{t}:{t+1}], v[{t}:{t+1}], 1.0 op_sel_hi:[1,0]
    v_pk_add_f32 v[{t+2}:{t+3}], v[{t+2}:{t+3}], 1.0 op_sel_hi:[1,0]
    v_rcp_f32 v{t}, v{t}
    v_rcp_f32 v{t+1}, v{t+1}
    v_rcp_f32 v{t+2}, v{t+2}
    v_rcp_f32 v{t+3}, v{t+3}
    v_pk_mul_f32 v[{t}:{t+1}], v[{t}:{t+1}], v[{t+6}:{t+7}]
    v_pk_mul_f32 v[{t+2}:{t+3}], v[{t+2}:{t+3}], v[{t+8}:{t+9}]
    v_cvt_pk_bf16_f32 v{dst}, v{t}, v{t+1}
    v_cvt_pk_bf16_f32 v{dst+1}, v{t+2}, v{t+3}
    """)

def g1_epilogue(q):
    g.c("---- GEMM1 epilogue")
    e(f"""
    s_mov_b32 s12, 0xbfb8aa3b
    s_mov_b32 s13, 0xbfb8aa3b
    s_lshl_b32 s14, s6, 3
    s_lshl_b32 s15, s3, 1
    s_add_u32 s14, s14, s15
    s_mul_i32 s14, s14, 57344
    s_lshr_b32 s15, s7, 2
    s_mul_i32 s15, s15, 14336             ; quarter
    s_add_u32 s14, s14, s15
    s_add_u32 s14, s14, {WS_HF}
    s_add_u32 s14, s14, s100
    s_and_b32 s15, s7, 3
    s_lshl_b32 s18, s15, 9
    s_add_u32 s18, s18, s14
    s_add_u32 s18, s18, 12288
    s_add_u32 s19, s18, 57344
    s_mul_i32 s15, s15, 3072
    s_add_u32 s14, s14, s15
    s_add_u32 s15, s14, 57344
    v_lshlrev_b32 v5, 3, v1               ; lane*8
    """)
    e("s_barrier")
    for jj in range(4):
        e(f"v_add_u32 v{VW2C+jj}, v{VW2+jj}, v{VTD+3}")
    assert not q
    NS = ENV('NSILU', 2)
    for p in range(NS): q.extend(w2_issue_items(p))
    g.side_on(q, ENV('SIDE_SILU', 20))
    for tt in range(2):
        for pr in range(3):
            a = ACC1 + (tt * 7 + 2 * pr) * 4
            silu_tile(a, a)
            silu_tile(a + 4, a + 2)
            g.vm(f"buffer_store_dwordx4 v[{a}:{a+3}], v{VL16}, {srd(S_WS)}, s{14+tt} offen offset:{1024*pr} sc1", "hst")
        a = ACC1 + (tt * 7 + 6) * 4
        silu_tile(a, a)
        g.vm(f"buffer_store_dwordx2 v[{a}:{a+1}], v5, {srd(S_WS)}, s{18+tt} offen sc1", "hst")
    g.side_off()

CA = [0, 64]
CB = [32, 96]
def conv_prep(q):
    g.c("---- conv prep")
    while q: q.pop(0)()
    poll_check("s93", "pollkv")
    Z = ZR
    e(f"""
    s_mul_i32 s18, s32, {URP}
    s_add_u32 s18, s18, {L_UR}
    s_add_u32 m0, s18, s36
    s_add_u32 s38, s37, {WS_KVR}
    """)
    g.vm(f"buffer_load_dwordx4 v{VL16}, {srd(S_WS)}, s38 offen sc1 lds", "ur")
    g.vm(f"buffer_load_dwordx4 v{VL16}, {srd(S_WS)}, s38 offen offset:1024 sc1 lds", "ur")
    g.wvm("ssm")
    e(f"""
    v_mov_b32 v{Z}, 0
    v_mov_b32 v{Z+1}, 0
    v_mov_b32 v{Z+2}, 0
    v_mov_b32 v{Z+3}, 0
    v_and_b32 v11, 1, v1
    v_cmp_eq_u32 vcc, 1, v11
    v_lshl_add_u32 v14, v11, 4, s16
    v_add_u32 v13, s17, v{VL16}
    v_add_u32 v12, s18, v{VL16}
    v_cndmask_b32 v{Z+4}, 0, v{Z+4}, vcc
    v_cndmask_b32 v{Z+5}, 0, v{Z+5}, vcc
    """)
    def copies(d, vaddr, off, t):
        g.ds(f"ds_write_b128 {vaddr}, v[{d}:{d+3}] offset:{off}")
        e(f"""
        v_alignbyte_b32 v{t}, v{d+1}, v{d}, 2
        v_alignbyte_b32 v{t+1}, v{d+2}, v{d+1}, 2
        v_alignbyte_b32 v{t+2}, v{d+3}, v{d+2}, 2
        v_alignbyte_b32 v{t+3}, v{d+4}, v{d+3}, 2
        """)
        g.ds(f"ds_write_b128 {vaddr}, v[{t}:{t+3}] offset:{off+TP}")
        e(f"""
        v_mov_b32 v{t+4}, v{d+1}
        v_mov_b32 v{t+5}, v{d+2}
        v_mov_b32 v{t+6}, v{d+3}
        v_mov_b32 v{t+7}, v{d+4}
        """)
        g.ds(f"ds_write_b128 {vaddr}, v[{t+4}:{t+7}] offset:{off+2*TP}")
        e(f"""
        v_mov_b32 v{t+8}, v{t+1}
        v_mov_b32 v{t+9}, v{t+2}
        v_mov_b32 v{t+10}, v{t+3}
        v_alignbyte_b32 v{t+11}, v{d+5}, v{d+4}, 2
        """)
        g.ds(f"ds_write_b128 {vaddr}, v[{t+8}:{t+11}] offset:{off+3*TP}")
    copies(SSM, "v13", 32, 76)
    copies(SSM + 6, "v13", 32 + 1024, 88)
    g.ds(f"ds_write_b128 v12, v[{Z}:{Z+3}] offset:4096")
    e("s_mov_b64 exec, 3")
    copies(Z, "v14", 0, 100)
    e("s_mov_b64 exec, -1")
    e(f"""
    v_add_u32 v10, 1, v3
    v_and_b32 v11, 3, v10
    v_sub_u32 v10, v10, v11
    v_mul_u32_u24 v11, {TP}, v11
    v_lshl_add_u32 v13, v10, 1, v11
    v_lshl_add_u32 v13, v4, 4, v13
    s_lshl_b32 s19, s33, 8
    s_add_u32 s24, s16, s19
    v_add_u32 v13, s24, v13
    v_lshlrev_b32 v10, 5, v3
    v_lshlrev_b32 v11, 4, v4
    v_sub_u32 v14, v11, v10
    s_add_u32 s24, s18, s19
    s_add_u32 s24, s24, 480
    v_add_u32 v14, s24, v14
    """)
    g.wvm("ur")
    hflag()
    g.wds_all()
    e("s_barrier")
    for p in range(ENV('NSILU', 2), 7): q.extend(w2_issue_items(p))
    for p in range(7, 14): q.extend(w2_stage_items(p))

def hflag():
    g.wvm("hst")
    flag_store(f"""
    s_lshl_b32 s91, s6, 1
    s_add_u32 s91, s91, s32
    s_lshl_b32 s91, s91, 8
    s_lshl_b32 s92, s7, 4
    s_add_u32 s91, s91, s92
    s_lshl_b32 s92, s33, 3
    s_add_u32 s91, s91, s92
    s_add_u32 s91, s91, {MB_H}
    """, "s91", "hflag")

def conv_reads(b0):
    b = b0 & 1
    def tg(n): return f"ca{b0}" if n < 3 else f"cb{b0}"
    def ar(b1, hh):
        return lambda: g.ds(f"ds_read_b64 a[{CA[b]+4*b1+2*hh}:{CA[b]+4*b1+2*hh+1}], v13 offset:{64*(8*b1+b0)+8*hh}", tg(b1))
    def br(x):
        return lambda: g.ds(f"ds_read_b128 a[{CB[b]+4*x}:{CB[b]+4*x+3}], v14 offset:{64*b0+512*(7-x)}", tg(x))
    items = []
    for n in range(8): items += [ar(n, 0), ar(n, 1), br(n)]
    return items
def conv_mfmas(b0):
    b = b0 & 1
    pairs = [(b1, x) for b1 in range(8) for x in range(8 - b1)]
    pairs.sort(key=lambda p: (max(p), p[0] + p[1]))
    seen = set()
    items = []
    def mf(b1, x, first):
        def f():
            a = CACC + 4 * (x + b1)
            c_ = "0" if first else f"v[{a}:{a+3}]"
            e(f"v_mfma_f32_16x16x32_bf16 v[{a}:{a+3}], a[{CA[b]+4*b1}:{CA[b]+4*b1+3}], a[{CB[b]+4*x}:{CB[b]+4*x+3}], {c_}")
        return f
    for (b1, x) in pairs:
        first = (b0 == 0) and ((b1 + x) not in seen)
        seen.add(b1 + x)
        items.append(mf(b1, x, first))
    return items

def hblk(p): return 128 + 16 * p if p < 6 else 16 * (p - 6)
def h_load_items():
    items = []
    def ld(p, tau):
        a = hblk(p) + 4 * tau
        return lambda: g.vm(f"buffer_load_dwordx4 a[{a}:{a+3}], v{VH+tau}, {srd(S_WS)}, s{26 + p // 3} offen offset:{1024*(p%3)} sc1", f"h{p}")
    def ld6(p, tau, hf):
        a = hblk(p) + 4 * tau + 2 * hf
        return lambda: g.vm(f"buffer_load_dwordx2 a[{a}:{a+1}], v{VH8+tau}, {srd(S_WS)}, 0 offen offset:{512*(2*(p-12)+hf)} sc1", f"h{p}")
    for p in range(12):
        for tau in range(4): items.append(ld(p, tau))
    for p in (12, 13):
        for tau in range(4):
            items += [ld6(p, tau, 0), ld6(p, tau, 1)]
    return items

def conv(q):
    g.c("---- conv main")
    for it in conv_reads(0): it()
    for b0 in range(4):
        fixed = {}
        g.wds(f"ca{b0}")
        fixed.setdefault(7, []).append(lambda b0=b0: g.wds(f"cb{b0}"))
        if b0 < 3: place(fixed, conv_reads(b0 + 1), 9, 1)
        if b0 == 3:
            def ph():
                e(f"s_lshl_b32 s93, s8, 8")
                e(f"s_lshl_b32 s92, s3, 6")
                e(f"s_add_u32 s93, s93, s92")
                e(f"s_add_u32 s93, s93, {MB_H}")
                poll_issue("s93", 8, "pollh")
            fixed.setdefault(10, []).append(ph)
            def hs():
                e(f"""
                s_mul_i32 s24, s3, 14336
                s_add_u32 s24, s24, {WS_HF}
                s_add_u32 s24, s24, s100
                v_lshlrev_b32 v5, 3, v1
                """)
                for tau in range(4):
                    e(f"""
                    s_add_u32 s25, s3, {tau}
                    s_and_b32 s25, s25, 3
                    s_lshl_b32 s31, s8, 2
                    s_add_u32 s25, s25, s31
                    s_mul_i32 s25, s25, 57344
                    s_add_u32 s25, s25, s24
                    v_add_u32 v{VH+tau}, s25, v{VL16}
                    s_add_u32 s25, s25, 12288
                    v_add_u32 v{VH8+tau}, s25, v5
                    """)
            fixed.setdefault(14, []).append(hs)
        run_slots(conv_mfmas(b0), fixed, q, cap=2, pace=ENV('PACEC', 3))
    while q: q.pop(0)()
    stamp(6)
    for jp in range(4):
        e(f"s_mul_hi_u32 s{26+jp}, s{94+jp}, {(1 << 32) * 3072 // (112 * 1024) + 1}")
    poll_check("s93", "pollh")
    stamp(7)
    hl = h_load_items()
    for _ in range(8): hl.pop(0)()
    e("s_barrier")
    e(f"""
    s_add_u32 s24, s22, {L_CRED}
    v_add_u32 v11, s24, v{VL16}
    s_xor_b32 s24, s24, 4096
    v_add_u32 v12, s24, v{VL16}
    s_cmp_eq_u32 s33, 0
    s_cbranch_scc1 L_cr_e0
    """)
    for n in range(4):
        e(f"ds_write_b128 v11, v[{CACC+4*n}:{CACC+4*n+3}] offset:{1024*n}")
    e("s_waitcnt lgkmcnt(0)")
    for r in range(16):
        e(f"v_mov_b32 v{CACC+r}, v{CACC+16+r}")
    e("s_branch L_cr_join")
    g.lab("L_cr_e0")
    for n in range(4):
        e(f"ds_write_b128 v11, v[{CACC+16+4*n}:{CACC+16+4*n+3}] offset:{1024*n}")
    g.lab("L_cr_join")
    for _ in range(4): hl.pop(0)()
    g.wds_all()
    e("s_barrier")
    for n in range(4):
        g.ds(f"ds_read_b128 v[{52+4*n}:{55+4*n}], v12 offset:{1024*n}", "cred")
    e(f"""
    v_lshlrev_b32 v10, 5, v3
    v_lshl_add_u32 v10, v4, 3, v10    ; 2*(16n+4q)
    s_sub_u32 s24, s18, s36
    s_add_u32 s24, s24, {4088 - 1536}
    v_sub_u32 v11, s24, v10
    """)
    for n in range(4):
        g.ds(f"ds_read_b64 v[{68+2*n}:{69+2*n}], v11 offset:{1536 - 512*n}", "ckv")
    for _ in range(4): hl.pop(0)()
    e(f"""
    s_lshl_b32 s24, s32, 4
    s_lshr_b32 s24, s39, s24
    s_lshl_b32 s24, s24, 16           ; D[d] as f32
    s_lshl_b32 s25, s3, 11
    s_add_u32 s25, s25, {L_CRED + 16384}
    v_add_u32 v11, s25, v10
    v_add_u32 v13, s25, v{VL16}
    """)
    g.wds("cred", "ckv")
    g.side_on(hl, 10)
    for n in range(4):
        a = CACC + 4 * n
        e(f"""
        v_pk_add_f32 v[{a}:{a+1}], v[{a}:{a+1}], v[{52+4*n}:{53+4*n}]
        v_pk_add_f32 v[{a+2}:{a+3}], v[{a+2}:{a+3}], v[{54+4*n}:{55+4*n}]
        v_and_b32 v188, 0xffff0000, v{69+2*n}
        v_lshlrev_b32 v189, 16, v{69+2*n}
        v_and_b32 v190, 0xffff0000, v{68+2*n}
        v_lshlrev_b32 v191, 16, v{68+2*n}
        v_fma_f32 v{a}, v188, s24, v{a}
        v_fma_f32 v{a+1}, v189, s24, v{a+1}
        v_fma_f32 v{a+2}, v190, s24, v{a+2}
        v_fma_f32 v{a+3}, v191, s24, v{a+3}
        v_cvt_pk_bf16_f32 v{192+2*n}, v{a}, v{a+1}
        v_cvt_pk_bf16_f32 v{193+2*n}, v{a+2}, v{a+3}
        """)
        g.ds(f"ds_write_b64 v11, v[{192+2*n}:{193+2*n}] offset:{512*n}", "cw")
    g.side_off()
    g.ds("ds_read_b128 v[188:191], v13", "cr2")
    g.ds("ds_read_b128 v[200:203], v13 offset:1024", "cr2")
    return hl

W2F = [224, 240]
def w2f(p):
    if p <= 11: return W2F[p & 1]
    return W2F[0] if p == 12 else hblk(0)
def g2_reads(p):
    grp = WG_[p % 7]
    rng = grp >> 16
    off = grp & 0xffff
    fb = w2f(p)
    def rd(i, hh):
        return lambda: g.ds(f"ds_read_b64_tr_b16 a[{fb+4*i+2*hh}:{fb+4*i+2*hh+1}], v{VW2R+4*rng+i} offset:{off+hh*512}", f"v{p}")
    return [rd(i, hh) for i in range(4) for hh in range(2)]
def g2_mf(p, i, tau):
    def f():
        a = ACC2 + (i * 4 + tau) * 4
        h = hblk(p) + 4 * tau
        fb = w2f(p)
        c_ = f"v[{a}:{a+3}]" if p > 0 else "0"
        e(f"v_mfma_f32_16x16x32_bf16 v[{a}:{a+3}], a[{fb+4*i}:{fb+4*i+3}], a[{h}:{h+3}], {c_}")
    return f
def g2_stage_writes(p):
    grp = WG_[p % 7]
    rng = grp >> 16
    off = grp & 0xffff
    b = STG + 16 * (p - 7)
    def w(jj):
        def f():
            if jj == 0: g.wvm(f"w2_{p}")
            g.ds(f"ds_write_b128 v{VSW+rng}, v[{b+4*jj}:{b+4*jj+3}] offset:{off+1024*jj}", f"sw{p}")
        return f
    return [w(jj) for jj in range(4)]
VSW = 243

def gemm2(hl):
    g.c("---- GEMM2")
    e(f"""
    v_bfe_u32 v10, v1, 2, 2           ; r
    v_lshrrev_b32 v11, 1, v10
    v_and_b32 v5, 1, v4
    v_lshl_add_u32 v11, v5, 1, v11    ; s(k)
    v_lshl_add_u32 v10, v4, 3, v10    ; 8q + r
    v_lshlrev_b32 v10, 7, v10
    v_and_b32 v5, 3, v1
    v_lshl_add_u32 v10, v5, 3, v10
    v_add_u32 v10, s22, v10
    v_add_u32 v{VSW}, s22, v{VL16}
    v_add_u32 v{VSW+1}, 0x10000, v{VSW}
    v_add_u32 v{VSW+2}, 0x20000, v{VSW}
    s_add_u32 s24, s37, {WS_Y2}
    s_add_u32 s24, s24, s100
    """)
    g.wds("cr2")
    g.vm(f"buffer_store_dwordx4 v[188:191], v{VL16}, {srd(S_WS)}, s24 offen sc1", "yst")
    g.vm(f"buffer_store_dwordx4 v[200:203], v{VL16}, {srd(S_WS)}, s24 offen offset:1024 sc1", "yst")
    for i in range(4):
        e(f"v_xor_b32 v5, {i}, v11")
        e(f"v_lshl_add_u32 v{VW2R+i}, v5, 5, v10")
        e(f"v_add_u32 v{VW2R+4+i}, 0x10000, v{VW2R+i}")
        e(f"v_add_u32 v{VW2R+8+i}, 0x20000, v{VW2R+i}")
    stamp(8)
    g.wvm("w2_0", "w2_1", "w2_2", "w2_3", "w2_4", "w2_5", "w2_6")
    for it in g2_reads(0): it()
    HP = ENV('HPACE', 3)
    for p in range(11):
        fixed = {}
        while g.vmq.count(f"h{p}") < 4: hl.pop(0)()
        g.wboth([f"h{p}"], [f"v{p}"])
        place(fixed, g2_reads(p + 1), 0, 1)
        if 1 <= p <= 7: place(fixed, g2_stage_writes(p + 6), 8, 1)
        if p == 10:
            place(fixed, g2_reads(13), 8, 1)
        if p == 3:
            def yf():
                g.wvm("yst")
                flag_store(f"""
                s_lshl_b32 s91, s4, 1
                s_add_u32 s91, s91, s33
                s_lshl_b32 s91, s91, 9
                s_lshl_b32 s92, s5, 4
                s_add_u32 s91, s91, s92
                s_lshl_b32 s92, s32, 3
                s_add_u32 s91, s91, s92
                s_add_u32 s91, s91, {MB_Y}
                """, "s91", "yflag")
            fixed.setdefault(12, []).append(yf)
        if p == 8:
            fixed.setdefault(12, []).append(lambda: e("s_barrier"))
        if p == 9:
            def py():
                e(f"""
                s_lshl_b32 s93, s9, 1
                s_lshr_b32 s92, s8, 4
                s_add_u32 s93, s93, s92
                s_lshl_b32 s93, s93, 9
                s_add_u32 s93, s93, {MB_Y}
                """)
                poll_issue("s93", 64, "polly")
            fixed.setdefault(9, []).append(py)
        mf = [g2_mf(p, i, tau) for i in range(4) for tau in range(4)]
        run_slots(mf, fixed, hl, cap=2, pace=HP)
    while hl: hl.pop(0)()
    stamp(9)
    Y0 = STG
    poll_check("s93", "polly")
    e(f"""
    v_lshrrev_b32 v5, 3, v1
    v_and_b32 v6, 7, v1
    v_lshlrev_b32 v7, 12, v5
    v_lshl_add_u32 v7, v6, 4, v7
    v_lshlrev_b32 v5, 10, v5
    v_lshl_add_u32 v5, v6, 4, v5
    s_lshl_b32 s24, s9, 6
    s_lshl_b32 s25, s3, 4
    s_add_u32 s24, s24, s25           ; d0 = 64cb2 + 16w
    s_lshl_b32 s24, s24, 12
    s_lshl_b32 s25, s8, 7
    s_add_u32 s24, s24, s25
    s_add_u32 s24, s24, {WS_Y2}
    s_add_u32 s24, s24, s100
    s_add_u32 s25, s24, {32768 - 1024}
    s_add_u32 m0, s22, {L_QY + 2048}
    s_lshl_b32 s31, s8, 6
    """)
    g.vm(f"buffer_load_dwordx4 v7, {srd(S_WS)}, s24 offen sc1 lds", "yld")
    g.vm(f"buffer_load_dwordx4 v7, {srd(S_WS)}, s25 offen offset:1024 sc1 lds", "yld")
    e(f"""
    s_lshl_b32 s25, s3, 4
    s_add_u32 s31, s31, s25
    s_lshl_b32 s25, s31, 2
    s_add_u32 s25, s25, {WS_G}
    v_lshlrev_b32 v6, 2, v3
    s_add_u32 m0, s22, {L_QY}
    s_lshl_b32 s24, s31, 10
    """)
    g.vm(f"buffer_load_dword v{Y0}, v6, {srd(S_WS)}, s25 offen sc1", "gld")
    e(f"""
    s_lshl_b32 s25, s9, 7
    s_add_u32 s31, s24, s25
    s_add_u32 s24, s31, {8192 - 1024}
    """)
    g.vm(f"buffer_load_dwordx4 v5, {srd(S_Q)}, s31 offen lds", "qld")
    g.vm(f"buffer_load_dwordx4 v5, {srd(S_Q)}, s24 offen offset:1024 lds", "qld")
    for it in g2_reads(12): it()
    for tau in range(1, 4):
        e(f"""
        s_add_u32 s24, s3, {tau}
        s_and_b32 s24, s24, 3
        s_mul_i32 s24, s24, 12288
        s_add_u32 s24, s24, {L_RED + (tau-1)*4096}
        v_add_u32 v{5+tau}, s24, v{VL16}
        """)
    g.wboth(["h11", "h12", "h13"], ["v11", "v13"])
    mf = []; fixed = {}
    for n, tau in enumerate((1, 2, 3, 0)):
        for p in (11, 13, 12):
            for i in range(4): mf.append(g2_mf(p, i, tau))
        if n == 0: fixed.setdefault(6, []).append(lambda: g.wds("v12"))
        if n >= 1:
            pt = (1, 2, 3)[n - 1]
            def wr(i, pt=pt):
                a = ACC2 + (i * 4 + pt) * 4
                return lambda: g.ds(f"ds_write_b128 v{5+pt}, v[{a}:{a+3}] offset:{1024*i}", "red")
            for i in range(4): fixed.setdefault(12 * n + 2 + 2 * i, []).append(wr(i))
    def addr():
        e(f"""
        s_mul_i32 s24, s3, 12288
        s_add_u32 s24, s24, {L_RED}
        v_add_u32 v9, s24, v{VL16}
        """)
    def addr2():
        e(f"""
        v_lshlrev_b32 v10, 7, v3
        v_lshl_add_u32 v10, v4, 3, v10
        s_add_u32 s24, s22, {L_QY - 65536}
        """)
    def addr3():
        e(f"""
        v_add_u32 v10, s24, v10
        v_lshrrev_b32 v11, 2, v1          ; 4q4 + r'
        v_lshlrev_b32 v11, 7, v11
        """)
    def addr4():
        e(f"""
        v_and_b32 v5, 3, v1
        v_lshl_add_u32 v11, v5, 3, v11
        s_lshl_b32 s24, s3, 5
        """)
    def addr5():
        e(f"""
        s_add_u32 s24, s24, {L_QY + 2048}
        v_add_u32 v11, s24, v11
        v_add_u32 v10, 0x10000, v10
        """)
    for k, f in enumerate((addr, addr2, addr3, addr4, addr5)): fixed.setdefault(1 + 2 * k, []).append(f)
    run_slots(mf, fixed)
    g.wvm("yld", "qld", "gld")
    g.wds_all()
    e("s_barrier")
    stamp(10)
    P0 = STG + 4
    QD = STG + 52
    YD = STG + 60
    T = STG + 68
    O = STG + 76
    GG = Y0
    for i in range(4):
        g.ds(f"ds_read_b64 v[{QD+2*i}:{QD+2*i+1}], v10 offset:{32*i}", f"eq{i}")
        g.ds(f"ds_read_b64_tr_b16 v[{YD+2*i}:{YD+2*i+1}], v11 offset:{4096*i}", f"eq{i}")
    for i in range(4):
        for tau in range(3):
            n = tau * 4 + i
            g.ds(f"ds_read_b128 v[{P0+4*n}:{P0+4*n+3}], v9 offset:{1024*n}", f"ep{i}")
    e(f"""
    v_sub_f32 v{GG+1}, 1.0, v{GG}
    v_cvt_pk_bf16_f32 v{GG+1}, v{GG+1}, v{GG+1}
    v_lshlrev_b32 v{GG+1}, 16, v{GG+1}      ; bf16(1-g)
    v_and_b32 v5, 1, v4
    v_lshrrev_b32 v6, 1, v4
    v_lshlrev_b32 v6, 4, v6
    v_lshl_add_u32 v6, v5, 5, v6
    v_lshl_add_u32 v6, v3, 10, v6
    """)
    AB = STG + 84
    for i in range(4):
        g.wds(f"eq{i}")
        qd, yd, r = QD + 2 * i, YD + 2 * i, AB + 4 * i
        e(f"""
        v_lshlrev_b32 v{r}, 16, v{qd}
        v_and_b32 v{r+1}, 0xffff0000, v{qd}
        v_lshlrev_b32 v{r+2}, 16, v{qd+1}
        v_and_b32 v{r+3}, 0xffff0000, v{qd+1}
        v_lshlrev_b32 v{T}, 16, v{yd}
        v_and_b32 v{T+1}, 0xffff0000, v{yd}
        v_lshlrev_b32 v{T+2}, 16, v{yd+1}
        v_and_b32 v{T+3}, 0xffff0000, v{yd+1}
        v_pk_mul_f32 v[{r}:{r+1}], v[{r}:{r+1}], v[{T}:{T+1}]
        v_pk_mul_f32 v[{r+2}:{r+3}], v[{r+2}:{r+3}], v[{T+2}:{T+3}]
        v_cvt_pk_bf16_f32 v{T}, v{r}, v{r+1}
        v_cvt_pk_bf16_f32 v{T+1}, v{r+2}, v{r+3}
        v_lshlrev_b32 v{r}, 16, v{T}
        v_and_b32 v{r+1}, 0xffff0000, v{T}
        v_lshlrev_b32 v{r+2}, 16, v{T+1}
        v_and_b32 v{r+3}, 0xffff0000, v{T+1}
        v_pk_mul_f32 v[{r}:{r+1}], v[{r}:{r+1}], v[{GG}:{GG+1}] op_sel_hi:[1,0]
        v_pk_mul_f32 v[{r+2}:{r+3}], v[{r+2}:{r+3}], v[{GG}:{GG+1}] op_sel_hi:[1,0]
        v_cvt_pk_bf16_f32 v{T}, v{r}, v{r+1}
        v_cvt_pk_bf16_f32 v{T+1}, v{r+2}, v{r+3}
        v_lshlrev_b32 v{r}, 16, v{T}
        v_and_b32 v{r+1}, 0xffff0000, v{T}
        v_lshlrev_b32 v{r+2}, 16, v{T+1}
        v_and_b32 v{r+3}, 0xffff0000, v{T+1}
        """)
    for i in range(4):
        a = ACC2 + (i * 4) * 4
        r = AB + 4 * i
        g.wds(f"ep{i}")
        p0, p1, p2 = [P0 + (tau * 4 + i) * 4 for tau in range(3)]
        e(f"""
        v_pk_add_f32 v[{a}:{a+1}], v[{a}:{a+1}], v[{p0}:{p0+1}]
        v_pk_add_f32 v[{a+2}:{a+3}], v[{a+2}:{a+3}], v[{p0+2}:{p0+3}]
        v_pk_add_f32 v[{p1}:{p1+1}], v[{p1}:{p1+1}], v[{p2}:{p2+1}]
        v_pk_add_f32 v[{p1+2}:{p1+3}], v[{p1+2}:{p1+3}], v[{p2+2}:{p2+3}]
        v_pk_add_f32 v[{a}:{a+1}], v[{a}:{a+1}], v[{p1}:{p1+1}]
        v_pk_add_f32 v[{a+2}:{a+3}], v[{a+2}:{a+3}], v[{p1+2}:{p1+3}]
        v_cvt_pk_bf16_f32 v{T}, v{a}, v{a+1}
        v_cvt_pk_bf16_f32 v{T+1}, v{a+2}, v{a+3}
        v_lshlrev_b32 v{a}, 16, v{T}
        v_and_b32 v{a+1}, 0xffff0000, v{T}
        v_lshlrev_b32 v{a+2}, 16, v{T+1}
        v_and_b32 v{a+3}, 0xffff0000, v{T+1}
        v_pk_mul_f32 v[{a}:{a+1}], v[{a}:{a+1}], v[{GG}:{GG+1}] op_sel:[0,1] op_sel_hi:[1,1]
        v_pk_mul_f32 v[{a+2}:{a+3}], v[{a+2}:{a+3}], v[{GG}:{GG+1}] op_sel:[0,1] op_sel_hi:[1,1]
        v_cvt_pk_bf16_f32 v{T}, v{a}, v{a+1}
        v_cvt_pk_bf16_f32 v{T+1}, v{a+2}, v{a+3}
        v_lshlrev_b32 v{a}, 16, v{T}
        v_and_b32 v{a+1}, 0xffff0000, v{T}
        v_lshlrev_b32 v{a+2}, 16, v{T+1}
        v_and_b32 v{a+3}, 0xffff0000, v{T+1}
        v_pk_add_f32 v[{r}:{r+1}], v[{r}:{r+1}], v[{a}:{a+1}]
        v_pk_add_f32 v[{r+2}:{r+3}], v[{r+2}:{r+3}], v[{a+2}:{a+3}]
        v_cvt_pk_bf16_f32 v{O+2*i}, v{r}, v{r+1}
        v_cvt_pk_bf16_f32 v{O+2*i+1}, v{r+2}, v{r+3}
        """)
        if i & 1:
            b = O + 2 * (i - 1)
            e("s_nop 1")
            e(f"v_permlane16_swap_b32 v{b}, v{b+2}")
            e(f"v_permlane16_swap_b32 v{b+1}, v{b+3}")
            g.vm(f"buffer_store_dwordx4 v[{b}:{b+3}], v6, {srd(S_OUT)}, s31 offen offset:{32*(i-1)}")

prologue()
p0_addr()
g1_setup()
e("s_waitcnt lgkmcnt(0)")
stamp(0)
e("s_lshl_b32 s38, s10, 2")
e("s_load_dword s39, s[40:41], s38")
if ENV('TLB', 0):
    for b in (S_W2, S_SSMK, S_OUT, S_DBG):
        e(f"s_load_dword s91, s[{b}:{b+1}], 0")
    for pg in range(7):
        e(f"s_mov_b32 s92, {pg << 21}")
        e(f"s_load_dword s91, s[{S_WS}:{S_WS+1}], s92")
e("s_or_b32 s12, s2, s3")
e("s_cmp_lg_u32 s12, 0")
e("s_cbranch_scc1 L_nononce")
e(f"""
s_or_b32 s43, s43, 0x40000000
v_mov_b32 v{VN}, s42
v_mov_b32 v{VN+1}, s43
v_mov_b32 v{VN+2}, 0
s_mov_b64 exec, 1
""")
e(f"buffer_store_dwordx2 v[{VN}:{VN+1}], v{VN+2}, {srd(S_DBG)}, 0 offen sc1")
e("s_mov_b64 exec, -1")
g.lab("L_nononce")
p0_loads()
stamp(16)
for it in g1_issue_items(0): it()
stamp(17)
g1_setup2()
p0_compute(g1_issue_items(1), g1_issue_items(2))
stamp(1)
Q = g1_issue_items(3) + g1_issue_items(4)
gemm1(Q)
stamp(2)
g1_epilogue(Q)
stamp(3)
conv_prep(Q)
stamp(5)
hl = conv(Q)
gemm2(hl)
if STAMPS:
    g.wvm_all()
    stamp(14)
g.lab("L_end")
e("s_endpgm")
g.lab("L_codeend")

body = "\n".join(g.L)
out = HEADER + f"""; Override launch geometry by editing the next line (default: block=256,
; grid=ceil(out_elems/256), lds=0). Harness parses it; keep it on one line.
; @launch grid=(256,1,1) block=(256,1,1) lds={LDS_TOTAL}
.amdgcn_target "amdgcn-amd-amdhsa--gfx950"
.text
.globl {KNAME}
.p2align 8
.type {KNAME},@function
{KNAME}:
{body}
.section .rodata,"a"
.p2align 6
.amdhsa_kernel {KNAME}
  .amdhsa_next_free_vgpr 512
  .amdhsa_next_free_sgpr 102
  .amdhsa_accum_offset 256
  .amdhsa_group_segment_fixed_size 0
  .amdhsa_kernarg_size 104
  .amdhsa_user_sgpr_count 2
  .amdhsa_user_sgpr_kernarg_segment_ptr 1
  .amdhsa_system_sgpr_workgroup_id_x 1
.end_amdhsa_kernel
"""
dst = sys.argv[1] if len(sys.argv) > 1 else "gated_mix__ssm_conv_h3__dense_activation_silu__prompt.s"
open(dst, "w").write(out)
print("wrote", dst, len(out), "bytes", len(g.L), "lines")
```

```python
import sys, os

KNAME = "gated_mix__ssm_conv_h3__dense_activation_silu__prompt_kernel"
HEADER = open("gated_mix__ssm_conv_h3__dense_activation_silu__prompt.s.ref").read().split("; Override launch")[0]
STAMPS = bool(os.environ.get('STAMPS'))
def ENV(n, d): return int(os.environ.get(n, d))
NTS = os.environ.get('NT', '').split(',')
def NT(k): return " nt" if k in NTS else ""

WS_KVR = 0
WS_HF  = 2 << 20
WS_Y2  = 10 << 20
WS_G   = 12 << 20
WS_MB  = (12 << 20) + 65536
MB_HE = WS_MB
MB_KV = WS_MB + 4096
MB_H  = WS_MB + 8192
MB_Y  = WS_MB + 32768
FSY = ENV('FSY', 7)
WS_STAMP = 13 << 20
WS_SIZE = 14 << 20

SLOT = 32768
NSLOT = 5
GR = [98304, 0, 16384, 32768, 49152, 65536, 81920]
TP = 4160
URP = 4608
LDS_TOTAL = 163840
L_TOEP = LDS_TOTAL - 8 * TP - 2 * URP
L_UR = L_TOEP + 8 * TP
L_RED = 114688
L_CX = L_TOEP
L_QY = GR[0]

_nlab = [0]
QCAP = ENV('QCAP', 12); VLAT = ENV('VLAT', 600); VRATE = ENV('VRATE', 74); DLAT = ENV('DLAT', 100); QD_ = ENV('QD', 11)
class G:
    def __init__(self):
        self.L = []; self.tail = []
        self.vmq = []; self.vmdone = 0
        self.dsq = []; self.dsdone = 0
        self.prev_stamp = None; self.snames = []
        self.t = 0; self.tM = -100; self.tV = -100; self.tB = -1000; self.tL = 0
        self.vmc = []; self.dsc = []; self.allc = []
    def e(self, s):
        for line in s.strip("\n").split("\n"):
            l = line.strip()
            if l:
                self.L.append("    " + l)
                self.adv(kind_of(l))
    def adv(self, k):
        if k == "B" and len(self.allc) >= QCAP: self.t = max(self.t, self.allc[-QCAP])
        self.t, self.tM, self.tV, self.tB, self.tL = step((self.t, self.tM, self.tV, self.tB, self.tL), k)
        if k == "B": self.allc.append(max(self.t + VLAT, (self.allc[-1] if self.allc else 0) + VRATE))
    def outstanding(self, t): return sum(1 for c in self.allc[-64:] if c > t)
    def c(self, s): self.L.append("    ; " + s)
    def lab(self, l): self.L.append(l + ":")
    def newlab(self, p="L"):
        _nlab[0] += 1
        return f"{p}_{_nlab[0]}"
    def vm(self, s, tag=None):
        self.e(s); self.vmq.append(tag); self.vmc.append(self.allc[-1])
    def ds(self, s, tag=None):
        self.e(s); self.dsq.append(tag); self.dsc.append(self.tL + DLAT)
    def _need(self, q, done, tags, cap):
        idx = -1
        for t in tags:
            pos = [i for i, x in enumerate(q) if x == t]
            assert pos, f"tag {t} not issued"
            idx = max(idx, pos[-1])
        if idx + 1 <= done: return None, done
        n = len(q) - 1 - idx
        if n > cap: n = cap
        return n, len(q) - n
    def wvm(self, *tags): self.wboth(tags, ())
    def wds(self, *tags): self.wboth((), tags)
    def wboth(self, vtags, dtags):
        n, self.vmdone = self._need(self.vmq, self.vmdone, vtags, 63) if vtags else (None, self.vmdone)
        m, self.dsdone = self._need(self.dsq, self.dsdone, dtags, 15) if dtags else (None, self.dsdone)
        s = []
        if n is not None: s.append(f"vmcnt({n})")
        if m is not None: s.append(f"lgkmcnt({m})")
        if s: self.e("s_waitcnt " + " ".join(s))
        if n is not None: self.t = max(self.t, self.vmc[self.vmdone - 1])
        if m is not None: self.t = max(self.t, self.dsc[self.dsdone - 1])
    def wvm_all(self):
        self.e("s_waitcnt vmcnt(0)"); self.vmdone = len(self.vmq)
        if self.vmc: self.t = max(self.t, self.vmc[-1])
    def wds_all(self):
        self.e("s_waitcnt lgkmcnt(0)"); self.dsdone = len(self.dsq)
        if self.dsc: self.t = max(self.t, self.dsc[-1])
    def ready(self, tags):
        r = 0
        for t in tags:
            pos = [i for i, x in enumerate(self.vmq) if x == t]
            if not pos: return 1 << 30
            r = max(r, self.vmc[pos[-1]])
        return r
    def ool(self, s):
        for line in s.strip("\n").split("\n"):
            l = line.strip()
            if l: self.tail.append(l if l.endswith(":") else "    " + l)

def kind_of(l):
    if l.startswith(";") or l.endswith(":"): return ""
    if l.startswith("v_mfma"): return "M"
    if l.startswith(("v_exp", "v_rcp")): return "E"
    if l.startswith(("v_pk_", "v_dot2")): return "K"
    if l.startswith("v_"): return "V"
    if l.startswith("ds_read_b128"): return "D"
    if l.startswith("ds_read"): return "T"
    if l.startswith("ds_write_b128"): return "W"
    if l.startswith("ds_"): return "Q"
    if l.startswith(("buffer_", "global_")): return "B"
    return "S"
LCOST = {"D": 16, "T": 9, "W": 53, "Q": 26}
def step(st, k):
    t, tM, tV, tB, tL = st
    if k == "M":
        t = max(t, tM + 16); tM = t; t += 4
    elif k in "VE" and k:
        t = max(t, tM + 8); t += 4 if k == "V" else 8; tV = t
    elif k == "K":
        t = max(t, tM + 20); t += 5; tV = t
    elif k == "S":
        t += 4
    elif k in LCOST:
        t = max(t, tV + 8); tL = max(tL, t) + LCOST[k]; t += 4
    elif k == "B":
        t = max(t, tV + 8); tB = t; t += 4
    return t, tM, tV, tB, tL

G0, GA, GS = G(), G(), G()
_cur = [G0]
class Proxy:
    def __getattr__(self, n): return getattr(_cur[0], n)
    def __setattr__(self, n, v): setattr(_cur[0], n, v)
g = Proxy()
def use(x): _cur[0] = x
def e(s): _cur[0].e(s)

class It:
    def __init__(self, k, f, after=-1):
        self.k, self.f, self.after, self.cont, self.need = k, f, after, False, None
    def __call__(self): self.f()
def I(s):
    return [It(kind_of(l.strip()), (lambda l=l.strip(): e(l))) for l in s.strip("\n").split("\n") if l.strip()]
def VM(s, tag=None): return It("B", lambda: g.vm(s, tag))
def DS(s, tag=None): return It(kind_of(s), lambda: g.ds(s, tag))
def F(k, f, need=None):
    x = It(k, f); x.need = need
    return x
def WV(*tags): return F("S", lambda: g.wvm(*tags), tags)
def grp(*items):
    fl = []
    for x in items: fl += x if isinstance(x, list) else [x]
    def f():
        for x in fl: x()
    r = It("".join(x.k for x in fl), f)
    nd = [t for x in fl if x.need for t in x.need]
    r.need = nd or None
    return r
def after(items, j):
    for x in items: x.after = max(x.after, j)
    return items
def run(items):
    for it in items: it()
def chain(items):
    for x in items[1:]: x.cont = True
    return items
def drain(q):
    while q and q[0].cont: q.pop(0)()
def insert(q, k, items):
    k = min(k, len(q))
    while k < len(q) and q[k].cont: k += 1
    q[k:k] = items

PACE = ENV('PACE', 24)
LSL = ENV('LSL', 40)
def okB(t, pace): return g.outstanding(t) < QD_ and t >= g.tB + pace
def fits(it, deadline, pace):
    st = (g.t, g.tM, g.tV, g.tB, g.tL)
    fb = fl = True
    if it.need and g.ready(it.need) > g.t: return False
    for k in it.k:
        if k == "B" and fb:
            if not okB(max(st[0], st[2] + 8), pace): return False
            fb = False
        if k in LCOST and fl:
            tt = max(st[0], st[2] + 8)
            if st[4] - tt > LSL: return False
            fl = False
        st = step(st, k)
    return st[0] <= deadline
def topup(q, *tags):
    R = g.ready(tags) if tags else g.t
    while q:
        it = q[0]
        ti = g.t
        if it.need: ti = max(ti, g.ready(it.need))
        if "B" in it.k and len(g.allc) >= QD_: ti = max(ti, g.allc[-QD_])
        if ti > max(R - 20, g.t): break
        q.pop(0)()
def pack(mf, queues, pre=None, span=16, pace=None, j0=0):
    pace = PACE if pace is None else pace
    for j, m in enumerate(mf, j0):
        if pre and j in pre: run(pre[j])
        m()
        sp = span(j) if callable(span) else span
        dl = g.tM + sp
        while True:
            for q in queues:
                if q and q[0].after <= j and (fits(q[0], dl, pace) or (len(q[0].k) > 3 and g.t <= g.tM + 4 and fits(q[0], dl + 4 * len(q[0].k), pace))):
                    q.pop(0)(); break
            else: break
def packv(main, queues, pace=None):
    pace = PACE if pace is None else pace
    for m in main:
        m()
        for q in queues:
            n = 0
            while q and n < 2 and fits(q[0], 1 << 30, pace if n == 0 else 0) and g.outstanding(g.t) < QD_ - (1 if n == 0 else 0):
                q.pop(0)(); n += 1

S_Q, S_W1, S_WS, S_DBG, S_SSMK, S_W2, S_OUT, S_K, S_V, S_SK, S_GW = [44 + 4 * i for i in range(11)]
def srd(b): return f"s[{b}:{b+3}]"
SRDN = {S_Q: 2 << 20, S_K: 2 << 20, S_V: 2 << 20, S_SK: 4096, S_SSMK: 2 << 20, S_W1: 1835008 + 4096, S_W2: 1835008, S_GW: 1024, S_OUT: 2 << 20, S_DBG: 256, S_WS: WS_SIZE}
def srd_set(*bs):
    it = []
    for b in bs: it += I(f"s_mov_b32 s{b+2}, {SRDN[b]}\ns_mov_b32 s{b+3}, 0x00020000")
    return it
SH = [72, 73, 74, 75, 76, 77, 78]

VZ, VL16, VNF, VPA = 10, 11, 12, 14
ACC = 16
STG = 80
CACC = 192
VX, VW1S, VXR, VW1R = 192, 196, 200, 206
ST = 224
VW2R = 232
VW2, VH, VPD, VCA, VCB, VSW = 240, 244, 248, 250, 251, 252
XF = [128, 144]
WF = [160, 176]
CA = [0, 64]
CB = [32, 96]
W2F = [224, 240]
def hblk(p): return 128 + 16 * p if p < 6 else 16 * (p - 6)

def stamp(i):
    if isinstance(i, str) and os.environ.get('MT'): print("  model", i, g.t)
    if not STAMPS: return
    if i == -1:
        e("s_memrealtime s[100:101]")
        e("s_memtime s[98:99]")
        return
    if isinstance(i, str):
        g.snames.append(i); i = len(g.snames)
        assert i <= 60
    if i == 0:
        e("v_writelane_b32 v255, s100, 62")
        e("v_writelane_b32 v255, s98, 0")
        return
    if g.prev_stamp is not None: e(f"v_writelane_b32 v255, s98, {g.prev_stamp}")
    e("s_memtime s[98:99]")
    g.prev_stamp = i
    if i == 61:
        e("s_memrealtime s[100:101]")
        g.wds_all()
        e("v_writelane_b32 v255, s98, 61")
        e("v_writelane_b32 v255, s30, 60")
        e("v_writelane_b32 v255, s100, 63")
        e("s_lshl_b32 s98, s2, 2")
        e("s_add_u32 s98, s98, s3")
        e("s_lshl_b32 s98, s98, 8")
        e(f"s_add_u32 s98, s98, {WS_STAMP}")
        e("v_lshlrev_b32 v254, 2, v1")
        g.vm(f"buffer_store_dword v255, v254, {srd(S_WS)}, s98 offen")
def STP(name): return F("VS" if STAMPS else "", lambda: stamp(name))

GMAP = ENV('GMAP', 0)
def prologue():
    stamp(-1)
    e("s_cmp_ge_u32 s2, 256")
    e("s_cbranch_scc1 L_end")
    for (b, off) in ((S_Q, 0), (S_W1, 56), (S_K, 8), (S_V, 16), (S_SK, 24), (S_DBG, 88), (S_WS, 96), (S_GW, 72), (S_SSMK, 32), (S_W2, 64), (S_OUT, 80)):
        e(f"s_load_dwordx2 s[{b}:{b+1}], s[0:1], {off}")
    e("s_load_dwordx2 s[40:41], s[0:1], 40")
    e("s_memrealtime s[42:43]")
    e(f"""
    v_lshrrev_b32 v2, 6, v0       ; wave
    v_and_b32 v1, 63, v0          ; lane
    {"s_lshr_b32 s4, s2, 5" if GMAP else "s_and_b32 s4, s2, 7"}           ; group
    {"s_and_b32 s5, s2, 31" if GMAP else "s_lshr_b32 s5, s2, 3"}          ; idx
    v_readfirstlane_b32 s3, v2
    v_lshlrev_b32 v{VL16}, 4, v1
    s_getreg_b32 s28, hwreg(20, 0, 4)
    s_lshl_b32 s22, s3, 12        ; wave*4096
    s_cmp_ge_u32 s5, 28
    s_cbranch_scc1 L_spare
    """)
def codepf():
    if ENV('NOPF', 0): return []
    lab = g.newlab("L_pc")
    def f():
        e("s_getpc_b64 s[12:13]")
        g.lab(lab)
        e(f"""
        s_lshl_b32 s14, s5, 2
        s_add_u32 s14, s14, s3
        s_lshl_b32 s14, s14, 10
        s_cmp_lt_u32 s14, (L_codeend - {lab} - 1024)
        s_cselect_b32 s14, s14, 0
        v_add_u32 v{ST+4}, s14, v{VL16}
        """)
        g.vm(f"global_load_dwordx4 v[{ST}:{ST+3}], v{ST+4}, s[12:13]", "codepf")
    return [F("SSSSSSVB", f)]
def ids():
    return I(f"""
    v_and_b32 v3, 15, v1          ; l&15
    v_lshrrev_b32 v4, 4, v1       ; q = l>>4
    v_mov_b32 v{VZ}, 0
    s_lshl_b32 s8, s4, 2
    s_and_b32 s9, s5, 3
    s_add_u32 s8, s8, s9
    s_lshr_b32 s9, s5, 2
    s_lshl_b32 s10, s4, 5
    s_add_u32 s10, s10, s5
    s_lshr_b32 s32, s3, 1
    s_and_b32 s33, s3, 1
    s_lshl_b32 s34, s10, 1
    s_add_u32 s34, s34, s32           ; d
    s_lshl_b32 s35, s34, 12           ; d*4096
    s_lshl_b32 s36, s33, 11           ; e*2048
    s_add_u32 s37, s35, s36
    """)
def sloads():
    return I(f"""
    s_lshl_b32 s38, s10, 2
    s_load_dword s39, s[40:41], s38
    s_load_dwordx2 s[94:95], s[{S_SSMK}:{S_SSMK+1}], s35
    s_add_u32 s38, s35, 2048
    s_load_dwordx2 s[96:97], s[{S_SSMK}:{S_SSMK+1}], s38
    """)

MAXP = 0x4000
def nonce_post():
    lab = g.newlab("L_nn")
    e(f"""
    s_or_b32 s24, s5, s3
    s_cmp_lg_u32 s24, 0
    s_cbranch_scc1 {lab}
    s_and_b32 s43, s43, 0xffffff
    s_or_b32 s43, s43, 0x40000000
    v_mov_b32 v6, s42
    v_mov_b32 v7, s43
    s_lshl_b32 s24, s4, 3
    v_mov_b32 v5, 0
    s_mov_b64 exec, 1
    buffer_store_dwordx2 v[6:7], v5, {srd(S_DBG)}, s24 offen sc1
    s_mov_b64 exec, -1
    """)
    g.lab(lab)
def nonce_load(sg, tag):
    return [grp(I(f"s_lshl_b32 s92, {sg}, 3"), VM(f"buffer_load_dwordx2 v[{VPD}:{VPD+1}], v{VZ}, {srd(S_DBG)}, s92 offen sc1", tag))]
def nonce_check(sg, sd, tag):
    def f():
        lab = g.newlab("L_np"); done = g.newlab("L_nd")
        g.wvm(tag)
        e(f"""
        v_readfirstlane_b32 s{sd+1}, v{VPD+1}
        s_cmp_eq_u32 s{sd+1}, 0
        s_cbranch_scc1 {lab}
        """)
        g.lab(done)
        e(f"v_readfirstlane_b32 s{sd}, v{VPD}")
        g.ool(f"""
        {lab}:
        s_mov_b32 s93, 0
        s_lshl_b32 s92, {sg}, 3
        {lab}_l:
        s_sleep 1
        buffer_load_dwordx2 v[{VPD}:{VPD+1}], v{VZ}, {srd(S_DBG)}, s92 offen sc1
        s_waitcnt vmcnt(0)
        v_readfirstlane_b32 s{sd+1}, v{VPD+1}
        s_add_u32 s93, s93, 1
        s_cmp_lt_u32 s93, {MAXP}
        s_cbranch_scc0 {done}
        s_cmp_eq_u32 s{sd+1}, 0
        s_cbranch_scc1 {lab}_l
        s_branch {done}
        """)
    return [F("SVSSV", f, [tag])]
def hello_post():
    def f():
        lab = g.newlab("L_hp")
        e(f"""
        s_lshl_b32 s91, s28, 24
        s_or_b32 s91, s91, s89
        s_mov_b32 s90, s88
        v_mov_b32 v{VNF}, s88
        v_mov_b32 v{VNF+1}, s91
        s_cmp_lg_u32 s3, 0
        s_cbranch_scc1 {lab}
        s_lshl_b32 s92, s4, 9
        s_lshl_b32 s93, s5, 3
        s_add_u32 s92, s92, s93
        s_add_u32 s92, s92, {MB_HE}
        s_mov_b64 exec, 1
        buffer_store_dwordx2 v[{VNF}:{VNF+1}], v{VZ}, {srd(S_WS)}, s92 offen
        s_mov_b64 exec, -1
        """)
        g.lab(lab)
    return [F("SSSVVSS", f)]
def hello_load():
    return [grp(I(f"""
    v_lshlrev_b32 v{VPA}, 3, v1
    s_lshl_b32 s92, s4, 9
    s_add_u32 s92, s92, {MB_HE}
    """), VM(f"buffer_load_dwordx2 v[{VPD}:{VPD+1}], v{VPA}, {srd(S_WS)}, s92 offen sc1", "hello"))]
NFAST = ENV('NFAST', 6)
def mode_check():
    def f():
        lab = g.newlab("L_mc"); done = g.newlab("L_md")
        g.wvm("hello")
        e(f"""
        v_cmp_eq_u64 vcc, s[90:91], v[{VPD}:{VPD+1}]
        s_mov_b32 s30, {ENV('FORCE_SLOW', 0)}
        s_cmp_eq_u32 vcc_lo, -1
        s_cbranch_scc0 {lab}
        """)
        g.lab(done)
        e(f"v_mov_b32 v{VNF+1}, s89")
        g.ool(f"""
        {lab}:
        s_mov_b32 s93, 0
        {lab}_l:
        s_mov_b32 s30, 0
        s_cmp_eq_u32 vcc_lo, -1
        s_cbranch_scc1 {done}
        s_cmp_eq_u32 vcc_hi, -1
        s_cbranch_scc1 {done}
        v_and_b32 v{VPD+1}, 0xf0ffffff, v{VPD+1}
        v_cmp_eq_u64 vcc, s[88:89], v[{VPD}:{VPD+1}]
        s_mov_b32 s30, 1
        s_cmp_eq_u32 vcc_hi, -1
        s_cbranch_scc1 {done}
        s_add_u32 s93, s93, 1
        s_cmp_lt_u32 s93, {MAXP}
        s_cbranch_scc0 {done}
        s_lshl_b32 s92, s4, 9
        s_add_u32 s92, s92, {MB_HE}
        s_cmp_lg_u32 s93, {NFAST}
        s_cbranch_scc1 {lab}_n
        s_lshl_b32 s30, s5, 3
        s_add_u32 s30, s30, s92
        s_mov_b64 exec, 1
        buffer_store_dwordx2 v[{VNF}:{VNF+1}], v{VZ}, {srd(S_WS)}, s30 offen offset:256 sc1
        s_mov_b64 exec, -1
        {lab}_n:
        s_sleep 1
        buffer_load_dwordx2 v[{VPD}:{VPD+1}], v{VPA}, {srd(S_WS)}, s92 offen sc1
        s_waitcnt vmcnt(0)
        v_cmp_eq_u64 vcc, s[90:91], v[{VPD}:{VPD+1}]
        s_branch {lab}_l
        """)
    return [F("SVSSSV", f, ["hello"])]
def flag_local(addr_lines, wtag, redo):
    def f():
        lab = g.newlab("L_fs"); done = g.newlab("L_fd")
        e(addr_lines)
        g.wvm(wtag)
        e(f"""
        s_cmp_lg_u32 s30, 0
        s_cbranch_scc1 {lab}
        s_mov_b64 exec, 1
        buffer_store_dwordx2 v[{VNF}:{VNF+1}], v{VZ}, {srd(S_WS)}, s92 offen
        s_mov_b64 exec, -1
        """)
        g.lab(done)
        g.ool(f"{lab}:\n" + redo + f"""
        s_waitcnt vmcnt(0)
        s_mov_b64 exec, 1
        buffer_store_dwordx2 v[{VNF}:{VNF+1}], v{VZ}, {srd(S_WS)}, s92 offen sc1
        s_mov_b64 exec, -1
        s_branch {done}
        """)
    return [F("S" * (len(I(addr_lines)) + 4) + "BS", f, [wtag])]
def poll_issue(addr_lines, vlines, tag):
    return [grp(I(vlines), I(addr_lines), VM(f"buffer_load_dwordx2 v[{VPD}:{VPD+1}], v{VPA}, {srd(S_WS)}, s93 offen sc1", tag))]
def poll_check(tag, sn=88):
    def f():
        lab = g.newlab("L_pl"); done = g.newlab("L_pd")
        g.wvm(tag)
        e(f"""
        v_cmp_ne_u64 vcc, s[{sn}:{sn+1}], v[{VPD}:{VPD+1}]
        s_cbranch_vccnz {lab}
        """)
        g.lab(done)
        g.ool(f"""
        {lab}:
        s_mov_b32 s92, 0
        {lab}_l:
        buffer_load_dwordx2 v[{VPD}:{VPD+1}], v{VPA}, {srd(S_WS)}, s93 offen sc1
        s_waitcnt vmcnt(0)
        v_cmp_ne_u64 vcc, s[{sn}:{sn+1}], v[{VPD}:{VPD+1}]
        s_add_u32 s92, s92, 1
        s_cmp_lt_u32 s92, {MAXP}
        s_cbranch_scc0 {done}
        s_cbranch_vccnz {lab}_l
        s_branch {done}
        """)
    return [F("SVS", f, [tag])]

PH = ENV('PH', 2)
ROT = {8: "s_lshr_b32 s24, s5, 1",
       4: "s_lshr_b32 s24, s5, 1\n    s_lshl_b32 s24, s24, 1",
       2: "s_lshr_b32 s24, s5, 1\n    s_lshl_b32 s24, s24, 2",
       3: "s_lshr_b32 s24, s5, 1\n    s_xor_b32 s24, s24, s5\n    s_lshl_b32 s24, s24, 2",
       5: "s_lshr_b32 s24, s5, 1\n    s_lshl_b32 s27, s5, 2\n    s_add_u32 s24, s24, s27",
       1: "s_mov_b32 s24, 0"}[PH]
def g1_setup():
    e(f"""
    s_lshl_b32 s6, s4, 1
    s_and_b32 s7, s5, 1
    s_add_u32 s6, s6, s7
    s_lshr_b32 s7, s5, 1
    v_lshrrev_b32 v5, 3, v1
    v_and_b32 v6, 7, v1
    v_lshrrev_b32 v7, 1, v5
    v_xor_b32 v7, v7, v6
    v_xor_b32 v8, 4, v7
    v_lshlrev_b32 v9, 10, v5
    v_lshl_add_u32 v9, v2, 15, v9
    s_lshl_b32 s20, s6, 17
    v_add_u32 v9, s20, v9
    v_lshl_add_u32 v{VX}, v7, 4, v9
    v_lshl_add_u32 v{VX+1}, v8, 4, v9
    v_add_u32 v{VX+2}, {0x4000 - 2048}, v{VX}
    v_add_u32 v{VX+3}, {0x6000 - 3072}, v{VX+1}
    v_add_u32 v{VX+1}, {0x2000 - 1024}, v{VX+1}
    {ROT}
    s_add_u32 s24, s24, 7
    s_and_b32 s24, s24, 7
    s_lshl_b32 s27, s24, 7
    s_add_u32 s23, s22, 16384
    s_lshl_b32 s21, s7, 8
    s_add_u32 s21, s21, 4096
    v_lshl_add_u32 v5, v2, 4, v5      ; 16w + (l>>3)
    v_mul_u32_u24 v5, 3584, v5
    v_and_b32 v6, 1, v1
    v_lshl_add_u32 v5, v6, 4, v5
    v_add_u32 v5, s21, v5
    v_bfe_u32 v6, v1, 1, 2
    v_bfe_u32 v8, v1, 4, 1
    v_xor_b32 v6, v6, v8
    v_xor_b32 v8, 2, v6
    v_lshl_add_u32 v{VW1S}, v6, 5, v5
    v_lshl_add_u32 v{VW1S+1}, v8, 5, v5
    v_subrev_u32 v{VW1S+2}, {2048 - 128}, v{VW1S}
    v_add_u32 v{VW1S+3}, {8*3584 - 3072 + 128}, v{VW1S+1}
    v_add_u32 v{VW1S+1}, {8*3584 - 1024}, v{VW1S+1}
    """)
    run(srd_set(S_Q, S_W1))
def g1_rd_setup():
    it = I(f"""
    v_lshrrev_b32 v5, 1, v3           ; t>>1
    v_xor_b32 v5, v5, v4              ; q ^ (t>>1)
    v_lshlrev_b32 v5, 4, v5
    v_lshl_add_u32 v5, v3, 7, v5      ; t*128 + ..
    s_lshl_b32 s24, s32, 13
    v_add_u32 v{VXR}, s24, v5
    v_xor_b32 v{VXR+3}, 64, v{VXR}
    v_bfe_u32 v5, v1, 2, 2            ; r
    v_lshrrev_b32 v8, 1, v5
    v_and_b32 v9, 1, v4
    v_lshl_add_u32 v8, v9, 1, v8      ; s
    v_lshlrev_b32 v5, 7, v5
    v_lshl_add_u32 v5, v9, 10, v5     ; (q&1)*1024
    v_lshrrev_b32 v9, 1, v4
    v_lshl_add_u32 v5, v9, 12, v5     ; (q>>1)*4096
    v_and_b32 v9, 3, v1
    v_lshl_add_u32 v5, v9, 3, v5
    s_add_u32 s24, s36, 16384
    v_add_u32 v5, s24, v5
    """)
    for j in range(4):
        it += I(f"""
        v_xor_b32 v9, {j}, v8
        v_lshl_add_u32 v{VW1R+3*j}, v9, 5, v5
        """)
    return it
def g1_rd_setup2():
    it = []
    for b in [VXR, VXR + 3] + [VW1R + 3 * j for j in range(4)]:
        it += I(f"v_add_u32 v{b+1}, 0x10000, v{b}\nv_add_u32 v{b+2}, 0x20000, v{b}")
    return it
def g1_issue(c):
    slot = c % NSLOT
    def w(k): return VM(f"buffer_load_dwordx4 v{VW1S+k}, {srd(S_W1)}, s29 offen offset:{1024*k}{NT('w1')} lds", f"c{c}")
    def x(j): return VM(f"buffer_load_dwordx4 v{VX+j}, {srd(S_Q)}, s27 offen offset:{1024*j} lds", f"c{c}")
    return chain([grp(I(f"s_add_u32 s27, s27, 128\ns_add_u32 m0, s22, {slot*SLOT}\ns_and_b32 s27, s27, 1023"), x(0)), x(1), x(2), x(3)]) + \
           chain([grp(I(f"s_add_u32 m0, s23, {slot*SLOT}\ns_mul_i32 s29, s27, 1792"), w(0)), w(1), w(2), w(3)])
def g1_reads(s):
    c, kk = s // 2, s % 2
    slot = c % NSLOT
    rng, so = slot >> 1, (slot & 1) * SLOT
    b = s & 1
    def xr(tt): return DS(f"ds_read_b128 a[{XF[b]+4*tt}:{XF[b]+4*tt+3}], v{VXR+3*kk+rng} offset:{so+2048*tt}", f"a{s}")
    def wr(i, hh): return DS(f"ds_read_b64_tr_b16 a[{WF[b]+4*i+2*hh}:{WF[b]+4*i+2*hh+1}], v{VW1R+3*i+rng} offset:{so+kk*8192+hh*512}", f"a{s}" if i < 2 else f"b{s}")
    return [wr(0, 0), wr(0, 1), xr(0), xr(1), xr(2), xr(3)] + [wr(i, hh) for i in range(1, 4) for hh in range(2)]
def g1_mfmas(s):
    b = s & 1
    def mf(i, tt):
        a = ACC + (tt * 4 + i) * 4
        c_ = f"v[{a}:{a+3}]" if s > 0 else "0"
        return I(f"v_mfma_f32_16x16x32_bf16 v[{a}:{a+3}], a[{WF[b]+4*i}:{WF[b]+4*i+3}], a[{XF[b]+4*tt}:{XF[b]+4*tt+3}], {c_}")[0]
    return [mf(i, tt) for i in range(4) for tt in range(4)]

RC = ENV('RC', 1)
def w2_setup():
    a, b, c_, d, f = 5, 6, 7, 8, 9
    it = I(f"""
    v_lshrrev_b32 v{a}, 3, v1           ; e
    v_bfe_u32 v{b}, v1, 1, 2            ; pospair
    v_and_b32 v{c_}, 1, v1               ; half
    v_bfe_u32 v{d}, v{a}, 1, 1            ; (e>>1)&1
    v_xor_b32 v{b}, v{b}, v{d}
    v_xor_b32 v{d}, 2, v{b}
    v_and_b32 v{f}, 3, v{a}
    v_lshrrev_b32 v{a}, 2, v{a}           ; e>>2
    v_lshl_add_u32 v{f}, v{a}, 4, v{f}      ; (e&3) + 16(e>>2)
    v_lshlrev_b32 v{f}, 10, v{f}
    v_lshl_add_u32 v{f}, v{c_}, 4, v{f}
    s_lshl_b32 s25, s9, 7
    s_mul_i32 s24, s3, {448 * 1024}
    s_add_u32 s25, s25, s24
    v_add_u32 v{f}, s25, v{f}
    v_lshl_add_u32 v{VW2}, v{b}, 5, v{f}
    v_lshl_add_u32 v{VW2+1}, v{d}, 5, v{f}
    v_add_u32 v{VW2+2}, {8192 - 2048}, v{VW2}
    v_add_u32 v{VW2+3}, {12288 - 3072}, v{VW2+1}
    v_add_u32 v{VW2+1}, {4096 - 1024}, v{VW2+1}
    """)
    if RC == 1: r = "s_and_b32 s24, s9, 1\ns_mul_i32 s24, s24, 3"
    elif RC == 2: r = "s_and_b32 s24, s9, 3\ns_lshl_b32 s24, s24, 1"
    elif RC == 3: r = "s_min_u32 s24, s9, 6"
    elif RC == 4: r = "s_and_b32 s24, s5, 3\ns_lshl_b32 s24, s24, 1"
    else: r = "s_mov_b32 s24, 0"
    it += I(r + f"\ns_lshl_b32 s{SH[0]}, s24, 10")
    for j in range(1, 7):
        it += [grp(I(f"s_add_u32 s{SH[j]}, s{SH[j-1]}, 1024\ns_cmp_eq_u32 s{SH[j]}, {7 << 10}\ns_cselect_b32 s{SH[j]}, 0, s{SH[j]}"))]
    return it
def touch():
    if not ENV('TOUCH', 0): return []
    return [grp(I(f"""
    v_lshlrev_b32 v{VPA}, 7, v1
    v_min_u32 v{VSW+1}, {47*128}, v{VPA}
    s_lshl_b32 s92, s5, 2
    s_add_u32 s92, s92, s3
    s_mul_i32 s92, s92, {112*128}
    """), VM(f"buffer_load_dword v{VSW}, v{VPA}, {srd(S_W2)}, s92 offen", "touch"),
    I(f"s_add_u32 s92, s92, 8192"), VM(f"buffer_load_dword v{VSW+1}, v{VSW+1}, {srd(S_W2)}, s92 offen", "touch"))]
def w2_dma(p):
    def d(jj): return VM(f"buffer_load_dwordx4 v{VW2+jj}, {srd(S_W2)}, s26 offen offset:{1024*jj}{NT('w2')} lds", f"w2_{p}")
    return chain([grp(I(f"s_add_u32 m0, s22, {GR[p]}\ns_lshl_b32 s26, s{SH[p]}, 6"), d(0)), d(1), d(2), d(3)])
def w2_stage(p):
    b = STG + 16 * (p - 7)
    def d(jj): return VM(f"buffer_load_dwordx4 v[{b+4*jj}:{b+4*jj+3}], v{VW2+jj}, {srd(S_W2)}, s26 offen offset:{1024*jj}{NT('w2')}", f"w2_{p}")
    return [grp(I(f"s_lshl_b32 s26, s{SH[p-7]}, 6\ns_add_u32 s26, s26, 32768"), d(0)), d(1), d(2), d(3)]
def h_setup():
    it = I(f"""
    s_mul_i32 s24, s3, 7168
    s_add_u32 s24, s24, {WS_HF}
    s_lshl_b32 s34, s8, 2
    """)
    for tau in range(4):
        it += I(f"""
        s_add_u32 s25, s3, {tau}
        s_and_b32 s25, s25, 3
        s_add_u32 s25, s25, s34
        s_mul_i32 s25, s25, 57344
        s_add_u32 s25, s25, s24
        v_add_u32 v{VH+tau}, s25, v{VL16}
        """)
    return it
def h_loads(p):
    def ld(tau, so):
        a = hblk(p) + 4 * tau
        return VM(f"buffer_load_dwordx4 a[{a}:{a+3}], v{VH+tau}, {srd(S_WS)}, {so} offen sc1", f"h{p}")
    if p < 7: return [ld(tau, f"s{SH[p]}") for tau in range(4)]
    return [grp(I(f"s_add_u32 s{SH[p-7]}, s{SH[p-7]}, 28672"), ld(0, f"s{SH[p-7]}"))] + [ld(tau, f"s{SH[p-7]}") for tau in range(1, 4)]
def pollh(half):
    return poll_issue(f"""
    s_lshl_b32 s93, s8, 9
    s_lshl_b32 s92, s3, 6
    s_add_u32 s93, s93, s92
    s_add_u32 s93, s93, {MB_H + 256 * half}
    """, f"v_min_u32 v{VPA}, 6, v1\nv_lshlrev_b32 v{VPA}, 3, v{VPA}", f"pollh{half}")
def g2_setup():
    it = I(f"""
    v_bfe_u32 v5, v1, 2, 2           ; r
    v_lshrrev_b32 v6, 1, v5
    v_and_b32 v7, 1, v4
    v_lshl_add_u32 v6, v7, 1, v6    ; s(k)
    v_lshl_add_u32 v5, v4, 3, v5    ; 8q + r
    v_lshlrev_b32 v5, 7, v5
    v_and_b32 v7, 3, v1
    v_lshl_add_u32 v5, v7, 3, v5
    v_add_u32 v5, s22, v5
    v_add_u32 v{VSW}, s22, v{VL16}
    v_add_u32 v{VSW+1}, 0x10000, v{VSW}
    """)
    for i in range(4):
        it += I(f"""
        v_xor_b32 v7, {i}, v6
        v_lshl_add_u32 v{VW2R+i}, v7, 5, v5
        v_add_u32 v{VW2R+4+i}, 0x10000, v{VW2R+i}
        """)
    return it

SSM = STG + 64
TC = STG + 76
def ssm_loads():
    return [VM(f"buffer_load_dwordx4 v[{SSM}:{SSM+3}], v{VL16}, {srd(S_SSMK)}, s37 offen{NT('ssm')}", "ssm"),
            VM(f"buffer_load_dwordx4 v[{SSM+6}:{SSM+9}], v{VL16}, {srd(S_SSMK)}, s37 offen offset:1024{NT('ssm')}", "ssm")]
def toep_valu():
    it = [WV("ssm")]
    dpp = "wave_shl:1 row_mask:0xf bank_mask:0xf"
    it += I(f"""
    v_mov_b32_dpp v{SSM+4}, v{SSM} {dpp}
    v_mov_b32_dpp v{SSM+5}, v{SSM+1} {dpp}
    v_mov_b32_dpp v{SSM+10}, v{SSM+6} {dpp}
    v_mov_b32_dpp v{SSM+11}, v{SSM+7} {dpp}
    v_readlane_b32 s24, v{SSM+6}, 0
    v_readlane_b32 s25, v{SSM+7}, 0
    v_writelane_b32 v{SSM+10}, s96, 63
    v_writelane_b32 v{SSM+11}, s97, 63
    v_writelane_b32 v{SSM+4}, s24, 63
    v_writelane_b32 v{SSM+5}, s25, 63
    """)
    for h in range(2):
        d, t = SSM + 6 * h, TC + 12 * h
        it += I(f"""
        v_alignbyte_b32 v{t}, v{d+1}, v{d}, 2
        v_alignbyte_b32 v{t+1}, v{d+2}, v{d+1}, 2
        v_alignbyte_b32 v{t+2}, v{d+3}, v{d+2}, 2
        v_alignbyte_b32 v{t+3}, v{d+4}, v{d+3}, 2
        v_mov_b32 v{t+4}, v{d+1}
        v_mov_b32 v{t+5}, v{d+2}
        v_mov_b32 v{t+6}, v{d+3}
        v_mov_b32 v{t+7}, v{d+4}
        v_mov_b32 v{t+8}, v{t+1}
        v_mov_b32 v{t+9}, v{t+2}
        v_mov_b32 v{t+10}, v{t+3}
        v_alignbyte_b32 v{t+11}, v{d+5}, v{d+4}, 2
        """)
    H = TC + 24
    it += I(f"""
    s_lshl_b32 s24, s94, 16                ; k0<<16
    s_lshr_b32 s25, s94, 16
    s_lshl_b32 s31, s95, 16
    s_or_b32 s25, s25, s31                 ; k1 | k2<<16
    v_mov_b32 v{H}, 0
    v_mov_b32 v{H+1}, 0
    v_mov_b32 v{H+2}, 0
    v_mov_b32 v{H+3}, 0
    v_writelane_b32 v{H+3}, s24, 3
    v_writelane_b32 v{H+3}, s94, 5
    v_writelane_b32 v{H+2}, s24, 7
    v_writelane_b32 v{H+3}, s25, 7
    s_mul_i32 s18, s32, {4*TP}
    s_add_u32 s18, s18, {L_TOEP}
    s_mul_i32 s20, s32, {URP}
    s_add_u32 s20, s20, {L_UR}
    v_bfe_u32 v5, v1, 1, 2
    v_mul_u32_u24 v5, {TP}, v5
    v_and_b32 v6, 1, v1
    v_lshl_add_u32 v5, v6, 4, v5
    v_add_u32 v5, s18, v5
    s_add_u32 s24, s20, {4096 - 128}
    v_add_u32 v6, s24, v{VL16}
    s_add_u32 s24, s18, s36
    v_add_u32 v{H+5}, s24, v{VL16}
    """)
    it.append(grp(I(f"v_cmp_gt_u32 vcc, 8, v1\ns_nop 1\nv_cndmask_b32 v{H+4}, v6, v5, vcc")))
    return it
def toep_writes():
    H = TC + 24
    it = []
    for h in range(2):
        d, t = SSM + 6 * h, TC + 12 * h
        for s_, r in enumerate((d, t, t + 4, t + 8)):
            it.append(DS(f"ds_write_b128 v{H+5}, v[{r}:{r+3}] offset:{32 + 1024*h + s_*TP}", "toep"))
    it.append(grp(I("s_mov_b32 exec_hi, 0xff"), DS(f"ds_write_b128 v{H+4}, v[{H}:{H+3}]", "toep"), I("s_mov_b32 exec_hi, -1")))
    return it
def conv_setup():
    return I(f"""
    v_add_u32 v5, 1, v3
    v_and_b32 v6, 3, v5
    v_sub_u32 v5, v5, v6
    v_mul_u32_u24 v6, {TP}, v6
    v_lshl_add_u32 v{VCA}, v5, 1, v6
    v_lshl_add_u32 v{VCA}, v4, 4, v{VCA}
    s_lshl_b32 s38, s33, 8
    s_add_u32 s24, s18, s38
    v_add_u32 v{VCA}, s24, v{VCA}
    v_lshlrev_b32 v5, 5, v3
    v_lshlrev_b32 v6, 4, v4
    v_sub_u32 v{VCB}, v6, v5
    s_add_u32 s24, s20, s38
    s_add_u32 s24, s24, 480
    v_add_u32 v{VCB}, s24, v{VCB}
    """)
def pollkv():
    return poll_issue(f"""
    s_lshl_b32 s93, s4, 7
    s_add_u32 s93, s93, {MB_KV}
    """, f"v_lshlrev_b32 v{VPA}, 3, v3", "pollkv")
def u_dma():
    return [grp(I(f"s_add_u32 m0, s20, s36\ns_add_u32 s38, s37, {WS_KVR}"),
                VM(f"buffer_load_dwordx4 v{VL16}, {srd(S_WS)}, s38 offen sc1{NT('u')} lds", "ur")),
            VM(f"buffer_load_dwordx4 v{VL16}, {srd(S_WS)}, s38 offen offset:1024 sc1{NT('u')} lds", "ur")]

def silu_setup():
    return I(f"""
    s_mov_b32 s16, 0xbfb8aa3b
    s_mov_b32 s17, 0xbfb8aa3b
    s_lshl_b32 s12, s6, 3
    s_lshl_b32 s13, s32, 2
    s_add_u32 s12, s12, s13
    s_mul_i32 s12, s12, 57344
    s_lshl_b32 s11, s7, 1
    s_add_u32 s11, s11, s33
    s_lshl_b32 s13, s11, 10
    s_add_u32 s12, s12, s13
    s_add_u32 s12, s12, {WS_HF}
    s_add_u32 s13, s12, 57344
    s_add_u32 s14, s13, 57344
    s_add_u32 s15, s14, 57344
    v_add_u32 v15, 28672, v{VL16}
    s_mul_i32 s24, s11, 37
    s_lshr_b32 s24, s24, 8                ; a/7
    s_add_u32 s24, s24, s11               ; a + a/7
    s_lshl_b32 s24, s24, 3
    s_lshl_b32 s11, s6, 1
    s_add_u32 s11, s11, s32
    s_lshl_b32 s11, s11, 9
    s_add_u32 s11, s11, s24
    s_add_u32 s11, s11, {MB_H}
    """)
def silu_tile(a, dst, t, pk):
    if pk:
        return I(f"""
        v_pk_mul_f32 v[{t}:{t+1}], v[{a}:{a+1}], s[16:17]
        v_pk_mul_f32 v[{t+2}:{t+3}], v[{a+2}:{a+3}], s[16:17]
        v_exp_f32 v{t}, v{t}
        v_exp_f32 v{t+1}, v{t+1}
        v_exp_f32 v{t+2}, v{t+2}
        v_exp_f32 v{t+3}, v{t+3}
        v_pk_add_f32 v[{t}:{t+1}], v[{t}:{t+1}], 1.0 op_sel_hi:[1,0]
        v_pk_add_f32 v[{t+2}:{t+3}], v[{t+2}:{t+3}], 1.0 op_sel_hi:[1,0]
        v_rcp_f32 v{t}, v{t}
        v_rcp_f32 v{t+1}, v{t+1}
        v_rcp_f32 v{t+2}, v{t+2}
        v_rcp_f32 v{t+3}, v{t+3}
        v_pk_mul_f32 v[{t}:{t+1}], v[{t}:{t+1}], v[{a}:{a+1}]
        v_pk_mul_f32 v[{t+2}:{t+3}], v[{t+2}:{t+3}], v[{a+2}:{a+3}]
        v_cvt_pk_bf16_f32 v{dst}, v{t}, v{t+1}
        v_cvt_pk_bf16_f32 v{dst+1}, v{t+2}, v{t+3}
        """)
    it = []
    for r in range(4): it += I(f"v_mul_f32 v{t+r}, s16, v{a+r}")
    for r in range(4): it += I(f"v_exp_f32 v{t+r}, v{t+r}")
    for r in range(4): it += I(f"v_add_f32 v{t+r}, 1.0, v{t+r}")
    for r in range(4): it += I(f"v_rcp_f32 v{t+r}, v{t+r}")
    for r in range(4): it += I(f"v_mul_f32 v{t+r}, v{t+r}, v{a+r}")
    it += I(f"v_cvt_pk_bf16_f32 v{dst}, v{t}, v{t+1}\nv_cvt_pk_bf16_f32 v{dst+1}, v{t+2}, v{t+3}")
    return it
def hstore(pr, tt, fl=""):
    a = ACC + (tt * 4 + 2 * pr) * 4
    return f"buffer_store_dwordx4 v[{a}:{a+3}], v{15 if pr else VL16}, {srd(S_WS)}, s{12+tt} offen{fl}"
def silu_unit(pr, tt, pk):
    a = ACC + (tt * 4 + 2 * pr) * 4
    return silu_tile(a, a, ST, pk) + silu_tile(a + 4, a + 2, ST + 4, pk) + [VM(hstore(pr, tt), f"hst{pr}")]
def hflag(pr):
    return flag_local(f"s_add_u32 s92, s11, {256*pr}", f"hst{pr}", "\n".join(hstore(pr, tt, " sc1") for tt in range(4)))

def conv_reads(b0):
    b = b0 & 1
    it = []
    for n in range(8):
        tg = f"cv{b0}_{n}"
        it += [DS(f"ds_read_b64 a[{CA[b]+4*n}:{CA[b]+4*n+1}], v{VCA} offset:{64*(8*n+b0)}", tg),
               DS(f"ds_read_b64 a[{CA[b]+4*n+2}:{CA[b]+4*n+3}], v{VCA} offset:{64*(8*n+b0)+8}", tg),
               DS(f"ds_read_b128 a[{CB[b]+4*n}:{CB[b]+4*n+3}], v{VCB} offset:{64*b0+512*(7-n)}", tg)]
    return it
CPAIRS = sorted([(b1, x) for b1 in range(8) for x in range(8 - b1)], key=lambda p: (max(p), p[0] + p[1]))
def conv_mfmas(b0):
    b = b0 & 1
    seen = set(); items = []
    def mf(b1, x, first):
        def f():
            a = CACC + 4 * (x + b1)
            c_ = "0" if first else f"v[{a}:{a+3}]"
            g.wds(f"cv{b0}_{max(b1, x)}")
            e(f"v_mfma_f32_16x16x32_bf16 v[{a}:{a+3}], a[{CA[b]+4*b1}:{CA[b]+4*b1+3}], a[{CB[b]+4*x}:{CB[b]+4*x+3}], {c_}")
        return F("M", f)
    for (b1, x) in CPAIRS:
        first = (b0 == 0) and ((b1 + x) not in seen)
        seen.add(b1 + x)
        items.append(mf(b1, x, first))
    return items
def conv_main(queues, span=16):
    run(conv_reads(0))
    for b0 in range(4):
        rq = conv_reads(b0 + 1) if b0 < 3 else []
        pack(conv_mfmas(b0), [rq] + queues, span=span, j0=36 * b0)
        run(rq)
def two_way(lines0, lines1, tag):
    def f():
        l1 = g.newlab("L_e1"); lj = g.newlab("L_ej")
        e(f"s_cmp_lg_u32 s33, 0\ns_cbranch_scc1 {l1}")
        for l in lines0: g.ds(l, tag)
        g.lab(lj)
        g.ool(f"{l1}:\n" + "\n".join(lines1) + f"\ns_branch {lj}")
    return F("SS" + "".join(kind_of(l) for l in lines0), f)
def BAR(): return I("s_barrier")
def conv_epi():
    it = I(f"""
    s_add_u32 s24, s22, {L_CX}
    v_add_u32 v8, s24, v{VL16}
    s_xor_b32 s25, s22, 4096
    s_add_u32 s25, s25, {L_CX}
    v_add_u32 v9, s25, v{VL16}
    v_lshlrev_b32 v5, 5, v3
    v_lshl_add_u32 v5, v4, 3, v5      ; 2*(16n+4q)
    s_sub_u32 s24, s20, s36
    s_add_u32 s24, s24, {4088 - 1536}
    v_sub_u32 v6, s24, v5
    """)
    for n in range(4):
        it.append(DS(f"ds_read_b64 v[{ST+2*n}:{ST+2*n+1}], v6 offset:{1536 - 512*n}", "ckv"))
    it += BAR()
    it.append(two_way([f"ds_write_b128 v8, v[{CACC+16+4*n}:{CACC+16+4*n+3}] offset:{1024*n}" for n in range(4)],
                      [f"ds_write_b128 v8, v[{CACC+4*n}:{CACC+4*n+3}] offset:{1024*n}" for n in range(4)], "cxw"))
    it += I(f"""
    s_lshl_b32 s24, s32, 4
    s_lshr_b32 s24, s39, s24
    s_lshl_b32 s19, s24, 16           ; D[d] as f32
    s_lshl_b32 s25, s3, 11
    s_add_u32 s25, s25, {L_CX + 16384}
    v_add_u32 v8, s25, v5
    """)
    it.append(grp(F("S", lambda: g.wds("cxw")), BAR()))
    it.append(two_way([f"ds_read_b128 v[{CACC+16+4*n}:{CACC+16+4*n+3}], v9 offset:{1024*n}" for n in range(4)],
                      [f"ds_read_b128 v[{CACC+4*n}:{CACC+4*n+3}], v9 offset:{1024*n}" for n in range(4)], "cxr"))
    it += I(f"v_add_u32 v9, s25, v{VL16}")
    it.append(F("S", lambda: g.wds("cxr")))
    for n in range(4):
        a = CACC + 4 * n
        it += I(f"""
        v_add_f32 v{a}, v{a}, v{a+16}
        v_add_f32 v{a+1}, v{a+1}, v{a+17}
        v_add_f32 v{a+2}, v{a+2}, v{a+18}
        v_add_f32 v{a+3}, v{a+3}, v{a+19}
        v_and_b32 v{a+16}, 0xffff0000, v{ST+1+2*n}
        v_lshlrev_b32 v{a+17}, 16, v{ST+1+2*n}
        v_and_b32 v{a+18}, 0xffff0000, v{ST+2*n}
        v_lshlrev_b32 v{a+19}, 16, v{ST+2*n}
        v_fma_f32 v{a}, v{a+16}, s19, v{a}
        v_fma_f32 v{a+1}, v{a+17}, s19, v{a+1}
        v_fma_f32 v{a+2}, v{a+18}, s19, v{a+2}
        v_fma_f32 v{a+3}, v{a+19}, s19, v{a+3}
        v_cvt_pk_bf16_f32 v{a}, v{a}, v{a+1}
        v_cvt_pk_bf16_f32 v{a+1}, v{a+2}, v{a+3}
        """)
        it.append(DS(f"ds_write_b64 v8, v[{a}:{a+1}] offset:{512*n}", "cw"))
    it.append(DS(f"ds_read_b128 v[{ST}:{ST+3}], v9", "cr2"))
    it.append(DS(f"ds_read_b128 v[{ST+4}:{ST+7}], v9 offset:1024", "cr2"))
    it += I(f"s_add_u32 s19, s37, {WS_Y2}")
    return it
def y_stores():
    return [grp(F("S", lambda: g.wds("cr2")), VM(f"buffer_store_dwordx4 v[{ST}:{ST+3}], v{VL16}, {srd(S_WS)}, s19 offen sc1", "yst")),
            VM(f"buffer_store_dwordx4 v[{ST+4}:{ST+7}], v{VL16}, {srd(S_WS)}, s19 offen offset:1024 sc1", "yst")]
def yflag():
    def f():
        e(f"""
        s_lshl_b32 s92, s4, 1
        s_add_u32 s92, s92, s33
        s_lshl_b32 s92, s92, 6
        s_lshl_b32 s24, s5, 1
        s_add_u32 s92, s92, s24
        s_add_u32 s92, s92, s32
        s_lshl_b32 s92, s92, {FSY}
        s_add_u32 s92, s92, {MB_Y}
        """)
        g.wvm("yst")
        e(f"""
        s_mov_b64 exec, 1
        buffer_store_dwordx2 v[{VNF}:{VNF+1}], v{VZ}, {srd(S_WS)}, s92 offen sc1
        s_mov_b64 exec, -1
        """)
    return [F("SSSSSSSSSSBS", f, ["yst"])]
def polly():
    return poll_issue(f"""
    s_lshl_b32 s93, s9, 1
    s_lshr_b32 s24, s8, 4
    s_add_u32 s93, s93, s24
    s_lshl_b32 s93, s93, 2
    s_add_u32 s93, s93, s3
    s_lshl_b32 s93, s93, {FSY + 4}
    s_add_u32 s93, s93, {MB_Y}
    """, f"v_lshrrev_b32 v{VPA}, 2, v1\nv_lshlrev_b32 v{VPA}, {FSY}, v{VPA}", "polly")

def w2f(p):
    if p <= 11: return W2F[p & 1]
    return W2F[0] if p == 12 else hblk(0)
def g2_reads(p):
    gb = GR[p % 7]
    rng, off = gb >> 16, gb & 0xffff
    fb = w2f(p)
    it = [DS(f"ds_read_b64_tr_b16 a[{fb+4*i+2*hh}:{fb+4*i+2*hh+1}], v{VW2R+4*rng+i} offset:{off+hh*512}", f"v{p}") for i in range(4) for hh in range(2)]
    if p < 7: it[0] = grp(WV(f"w2_{p}"), it[0])
    return it
def g2_mf(p, i, tau):
    a = ACC + (i * 4 + tau) * 4
    h = hblk(p) + 4 * tau
    fb = w2f(p)
    c_ = f"v[{a}:{a+3}]" if p > 0 else "0"
    return I(f"v_mfma_f32_16x16x32_bf16 v[{a}:{a+3}], a[{fb+4*i}:{fb+4*i+3}], a[{h}:{h+3}], {c_}")[0]
def g2_stage_writes(p):
    gb = GR[p % 7]
    rng, off = gb >> 16, gb & 0xffff
    b = STG + 16 * (p - 7)
    it = [DS(f"ds_write_b128 v{VSW+rng}, v[{b+4*jj}:{b+4*jj+3}] offset:{off+1024*jj}", f"sw{p}") for jj in range(4)]
    it[0] = grp(WV(f"w2_{p}"), it[0])
    return it
GG = STG
QD = STG + 4
YD = STG + 12
AB = STG + 20
OO = STG + 36
P0 = STG + 48
def qy_loads():
    it = [grp(I(f"""
    v_lshrrev_b32 v5, 3, v1
    v_and_b32 v6, 7, v1
    v_lshlrev_b32 v7, 12, v5
    v_lshl_add_u32 v7, v6, 4, v7
    v_lshlrev_b32 v5, 10, v5
    v_lshl_add_u32 v5, v6, 4, v5
    v_lshlrev_b32 v6, 3, v3
    """))]
    it += I(f"""
    s_lshl_b32 s24, s9, 6
    s_lshl_b32 s25, s3, 4
    s_add_u32 s24, s24, s25           ; d0 = 64cb2 + 16w
    s_lshl_b32 s24, s24, 12
    s_lshl_b32 s31, s8, 7
    s_add_u32 s24, s24, s31
    s_add_u32 s19, s24, {WS_Y2}
    s_add_u32 s21, s19, {32768 - 1024}
    s_lshl_b32 s31, s8, 6
    s_add_u32 s31, s31, s25
    s_lshl_b32 s38, s31, 3
    s_add_u32 s38, s38, {WS_G}
    s_lshl_b32 s24, s31, 10
    s_lshl_b32 s25, s9, 7
    s_add_u32 s31, s24, s25
    s_add_u32 s34, s31, {8192 - 1024}
    """)
    q = [grp(F("S", lambda: g.wds("v7")), I(f"s_add_u32 m0, s22, {L_QY}\ns_nop 0"), VM(f"buffer_load_dwordx4 v5, {srd(S_Q)}, s31 offen lds", "qld")),
         VM(f"buffer_load_dwordx4 v5, {srd(S_Q)}, s34 offen offset:1024 lds", "qld"),
         VM(f"buffer_load_dwordx2 v[{GG+2}:{GG+3}], v6, {srd(S_WS)}, s38 offen sc1", "gld")]
    y = [grp(I(f"s_add_u32 m0, s22, {L_QY + 2048}\ns_nop 0"), VM(f"buffer_load_dwordx4 v7, {srd(S_WS)}, s19 offen sc1{NT('y')} lds", "yld")),
         VM(f"buffer_load_dwordx4 v7, {srd(S_WS)}, s21 offen offset:1024 sc1{NT('y')} lds", "yld")]
    return it, q, y
def g_check():
    def f():
        lab = g.newlab("L_gp"); done = g.newlab("L_gd")
        g.wvm("gld")
        e(f"""
        v_cmp_ne_u32 vcc, s88, v{GG+3}
        s_cbranch_vccnz {lab}
        """)
        g.lab(done)
        g.ool(f"""
        {lab}:
        s_mov_b32 s92, 0
        {lab}_l:
        buffer_load_dwordx2 v[{GG+2}:{GG+3}], v6, {srd(S_WS)}, s38 offen sc1
        s_waitcnt vmcnt(0)
        v_cmp_ne_u32 vcc, s88, v{GG+3}
        s_add_u32 s92, s92, 1
        s_cmp_lt_u32 s92, {MAXP}
        s_cbranch_scc0 {done}
        s_cbranch_vccnz {lab}_l
        s_branch {done}
        """)
    return [F("SVS", f, ["gld"])]
def abranch():
    it = I(f"""
    v_lshlrev_b32 v5, 7, v3
    v_lshl_add_u32 v5, v4, 3, v5
    s_add_u32 s24, s22, {L_QY}
    v_add_u32 v5, s24, v5             ; q read
    v_lshrrev_b32 v7, 2, v1           ; 4q4 + r'
    v_lshlrev_b32 v7, 7, v7
    v_and_b32 v6, 3, v1
    v_lshl_add_u32 v7, v6, 3, v7
    s_lshl_b32 s24, s3, 5
    s_add_u32 s24, s24, {L_QY + 2048}
    v_add_u32 v7, s24, v7             ; y read
    v_sub_f32 v{GG}, 1.0, v{GG+2}
    v_cvt_pk_bf16_f32 v{GG}, v{GG}, v{GG}
    v_lshlrev_b32 v{GG}, 16, v{GG}      ; bf16(1-g)
    """)
    it.append(grp(WV("yld", "qld"), BAR()))
    for i in range(4):
        it.append(DS(f"ds_read_b64 v[{QD+2*i}:{QD+2*i+1}], v5 offset:{32*i}", f"eq{i}"))
        it.append(DS(f"ds_read_b64_tr_b16 v[{YD+2*i}:{YD+2*i+1}], v7 offset:{4096*i}", f"eq{i}"))
    T = ST
    for i in range(4):
        qd, yd, r = QD + 2 * i, YD + 2 * i, AB + 4 * i
        it.append(F("S", lambda i=i: g.wds(f"eq{i}")))
        it += I(f"""
        v_lshlrev_b32 v{r}, 16, v{qd}
        v_and_b32 v{r+1}, 0xffff0000, v{qd}
        v_lshlrev_b32 v{r+2}, 16, v{qd+1}
        v_and_b32 v{r+3}, 0xffff0000, v{qd+1}
        v_lshlrev_b32 v{T}, 16, v{yd}
        v_and_b32 v{T+1}, 0xffff0000, v{yd}
        v_lshlrev_b32 v{T+2}, 16, v{yd+1}
        v_and_b32 v{T+3}, 0xffff0000, v{yd+1}
        v_mul_f32 v{r}, v{r}, v{T}
        v_mul_f32 v{r+1}, v{r+1}, v{T+1}
        v_mul_f32 v{r+2}, v{r+2}, v{T+2}
        v_mul_f32 v{r+3}, v{r+3}, v{T+3}
        v_mul_f32 v{r}, v{r}, v{GG+2}
        v_mul_f32 v{r+1}, v{r+1}, v{GG+2}
        v_mul_f32 v{r+2}, v{r+2}, v{GG+2}
        v_mul_f32 v{r+3}, v{r+3}, v{GG+2}
        """)
    return it

def gemm2(vq, cq):
    g.c("---- GEMM2")
    stamp("g2_start")
    PY = ENV('PY', 9)
    PF = ENV('PF', 4)
    sw = []
    for p in range(7, 14): sw += after(g2_stage_writes(p), 16 * (p - 6))
    qyi, ql, yl = qy_loads()
    run(g2_reads(0))
    for p in range(11):
        def need(tag, n=4):
            while g.vmq.count(tag) < n: vq.pop(0)()
        need(f"h{p}")
        if p + 1 >= 7:
            while g.dsq.count(f"sw{p+1}") < 4: sw.pop(0)()
        rq = g2_reads(p + 1)
        if p == 10:
            while sw: sw.pop(0)()
            rq += g2_reads(13)
        if p == PF:
            run(cq); del cq[:]
            need("yst", 2)
            cq += yflag() + BAR()
        if p == PY - 2: cq += nonce_load("s9", "ynonce") + qyi
        if p == PY - 1:
            run(cq); del cq[:]
            cq += nonce_check("s9", 90, "ynonce") + polly() + ql
        if p == PY:
            run(cq); del cq[:]
            cq += after(poll_check("polly", 90) + yl, 16 * p + ENV('PYD', 8)) + g_check()
        topup(vq, f"h{p}")
        g.wboth([f"h{p}"], [f"v{p}"])
        if p % 2 == 0: stamp(f"g2p{p}")
        pack([g2_mf(p, i, tau) for i in range(4) for tau in range(4)], [rq, vq, cq, sw], j0=16 * p)
        run(rq)
    run(vq); del vq[:]
    run(cq); del cq[:]
    stamp("g2_tail")
    run(g2_reads(12))
    for tau in range(1, 4):
        e(f"""
        s_add_u32 s24, s3, {tau}
        s_and_b32 s24, s24, 3
        s_mul_i32 s24, s24, 12288
        s_add_u32 s24, s24, {L_RED + (tau-1)*4096}
        v_add_u32 v{VH+tau}, s24, v{VL16}
        """)
    g.wboth(["h11", "h13"], ["v11", "v13"])
    mf = []; pre = {}; wq = []
    for n, tau in enumerate((1, 2, 3, 0)):
        for p in (11, 13, 12):
            for i in range(4): mf.append(g2_mf(p, i, tau))
        if n >= 1:
            pt = n
            for i in range(4):
                a = ACC + (i * 4 + pt) * 4
                wq += after([DS(f"ds_write_b128 v{VH+pt}, v[{a}:{a+3}] offset:{1024*i}", "red")], 12 * n + 1)
    pre[8] = [F("S", lambda: g.wboth(["h12"], ["v12"]))]
    ab = I(f"""
    s_mul_i32 s24, s3, 12288
    s_add_u32 s24, s24, {L_RED}
    v_add_u32 v9, s24, v{VL16}
    v_and_b32 v5, 1, v4
    v_lshrrev_b32 v8, 1, v4
    v_lshlrev_b32 v8, 4, v8
    v_lshl_add_u32 v8, v5, 5, v8
    v_lshl_add_u32 v8, v3, 10, v8
    """) + abranch()
    pack(mf, [wq, ab], pre=pre)
    run(wq)
    g.wds("red")
    e("s_barrier")
    stamp("final")
    for i in range(4):
        for tau in range(3):
            n = tau * 4 + i
            g.ds(f"ds_read_b128 v[{P0+4*n}:{P0+4*n+3}], v9 offset:{1024*n}", f"ep{i}")
    run(ab)
    for i in range(4):
        a = ACC + (i * 4) * 4
        r = AB + 4 * i
        g.wds(f"ep{i}")
        p0, p1, p2 = [P0 + (tau * 4 + i) * 4 for tau in range(3)]
        e(f"""
        v_pk_add_f32 v[{a}:{a+1}], v[{a}:{a+1}], v[{p0}:{p0+1}]
        v_pk_add_f32 v[{a+2}:{a+3}], v[{a+2}:{a+3}], v[{p0+2}:{p0+3}]
        v_pk_add_f32 v[{p1}:{p1+1}], v[{p1}:{p1+1}], v[{p2}:{p2+1}]
        v_pk_add_f32 v[{p1+2}:{p1+3}], v[{p1+2}:{p1+3}], v[{p2+2}:{p2+3}]
        v_pk_add_f32 v[{a}:{a+1}], v[{a}:{a+1}], v[{p1}:{p1+1}]
        v_pk_add_f32 v[{a+2}:{a+3}], v[{a+2}:{a+3}], v[{p1+2}:{p1+3}]
        v_pk_fma_f32 v[{r}:{r+1}], v[{a}:{a+1}], v[{GG}:{GG+1}], v[{r}:{r+1}] op_sel:[0,0,0] op_sel_hi:[1,0,1]
        v_pk_fma_f32 v[{r+2}:{r+3}], v[{a+2}:{a+3}], v[{GG}:{GG+1}], v[{r+2}:{r+3}] op_sel:[0,0,0] op_sel_hi:[1,0,1]
        v_cvt_pk_bf16_f32 v{OO+2*i}, v{r}, v{r+1}
        v_cvt_pk_bf16_f32 v{OO+2*i+1}, v{r+2}, v{r+3}
        """)
        if i & 1:
            b = OO + 2 * (i - 1)
            e("s_nop 1")
            e(f"v_permlane16_swap_b32 v{b}, v{b+2}")
            e(f"v_permlane16_swap_b32 v{b+1}, v{b+3}")
            g.vm(f"buffer_store_dwordx4 v[{b}:{b+3}], v8, {srd(S_OUT)}, s31 offen offset:{32*(i-1)}{NT('out')}")

def mid_and_g2(vq, silu, post):
    topup(vq, "pollkv")
    run(poll_check("pollkv"))
    stamp("kvseen")
    drain(vq)
    run(u_dma())
    pre = conv_setup() + h_setup() + g2_setup()
    packv(silu, [vq])
    stamp("silu_end")
    insert(vq, ENV('FB', 5), post)
    packv(pre, [vq])
    topup(vq, "ur")
    g.wboth(["ur"], ["toep"])
    e("s_barrier")
    stamp("conv_start")
    HP = ENV('HP', 8)
    k = max(len(vq) - HP, 0)
    if post and post[0] in vq: k = max(k, vq.index(post[0]) + 1)
    insert(vq, k, pollh(0))
    vq += poll_check("pollh0")
    for p in range(4): vq += h_loads(p)
    vq += pollh(1)
    for p in range(4, 6): vq += h_loads(p)
    conv_main([vq])
    stamp("conv_end")
    vq += h_loads(6) + poll_check("pollh1")
    cq = conv_epi() + y_stores()
    for p in range(7, 14): vq += h_loads(p)
    e("s_nop 7")
    gemm2(vq, cq)

def regular():
    g1_setup()
    e("s_waitcnt lgkmcnt(0)")
    stamp(0)
    e(f"s_sub_u32 s{S_W1}, s{S_W1}, 4096\ns_subb_u32 s{S_W1+1}, s{S_W1+1}, 0")
    run(g1_issue(0))
    run(srd_set(S_DBG, S_WS))
    nonce_post()
    vq = g1_issue(1) + codepf() + g1_issue(2)
    packv(ids() + sloads() + g1_rd_setup() + g1_rd_setup2() + srd_set(S_SSMK, S_W2, S_OUT), [vq])
    stamp("issued")
    vq += nonce_load("s4", "nonce") + g1_issue(3) + g1_issue(4)
    topup(vq, "c0")
    cq = w2_setup() + silu_setup()
    g.wvm("c0")
    g.wds_all()
    e("s_barrier")
    run(g1_reads(0))
    SSMP = ENV('SSMP', 6)
    for s in range(16):
        c = s // 2
        if s % 2 == 0: stamp(f"c{c}")
        pre = {}
        if s % 2 == 1:
            if c + 1 < 8:
                while g.vmq.count(f"c{c+1}") < 8: vq.pop(0)()
                topup(vq, f"c{c+1}")
                g.wboth([f"c{c+1}"], [f"a{s}", f"b{s}"])
            else: g.wds(f"a{s}", f"b{s}")
            e("s_barrier")
            if c <= 2:
                if c + 5 == SSMP: vq += ssm_loads()
                if c + 5 == ENV('TCH', 5): vq += chain(touch())
                vq += g1_issue(c + 5)
            if c == 2:
                run(cq); del cq[:]
                cq += nonce_check("s4", 88, "nonce") + hello_post()
                if SSMP == 8: vq += ssm_loads()
            if c == 3:
                run(cq); del cq[:]
                vq += hello_load() + w2_dma(0)
            if c == ENV('TVC', 5):
                while g.vmq.count("ssm") < 2: vq.pop(0)()
                cq += toep_valu() + toep_writes()
            if c == 5: vq += w2_dma(1) + w2_dma(2)
            if c == 6: vq += w2_dma(3) + w2_dma(4)
            if c == 7:
                while g.vmq.count("hello") < 1: vq.pop(0)()
                cq += mode_check()
                vq += w2_dma(5) + w2_dma(6)
        else:
            g.wds(f"a{s}")
            pre[16 * s + 8] = [F("S", lambda s=s: g.wds(f"b{s}"))]
        rq = g1_reads(s + 1) if s + 1 < 16 else []
        pack(g1_mfmas(s), [rq, vq, cq], pre=pre, j0=16 * s)
        run(rq)
    run(cq); del cq[:]
    stamp("g1_end")
    for p in range(7, 14): vq += w2_stage(p)
    KVP = ENV('KVP', 5)
    units = [silu_unit(pr, tt, True) for pr in range(2) for tt in range(4)]
    FD = ENV('FD', 2)
    seq = []
    for u in range(8):
        if u == KVP - 1: seq += pollkv()
        if u == KVP: break
        seq += units[u]
        if u == 3 + FD: seq += hflag(0)
    packv(seq, [vq])
    seq = []
    for u in range(KVP, 8):
        seq += units[u]
        if u == 3 + FD: seq += hflag(0)
    vq2 = hflag(1)
    return vq, seq, vq2


def kreg(b, j): return 16 + 44 * b + 4 * j
def vreg(j): return 104 + 4 * j
KO = 136
UKW = 168
UTP = 200
UA = 232
def spare():
    g.lab("L_spare")
    e(f"""
    s_sub_u32 s24, s5, 28
    s_lshl_b32 s24, s24, 2
    s_add_u32 s6, s24, s3
    v_lshrrev_b32 v5, 3, v1           ; rg
    v_and_b32 v6, 7, v1               ; p
    s_lshl_b32 s24, s6, 17            ; t0*1024
    s_lshl_b32 s25, s4, 7
    s_add_u32 s24, s24, s25
    v_lshlrev_b32 v7, 13, v5
    v_lshl_add_u32 v7, v6, 4, v7
    v_add_u32 v7, s24, v7
    v_subrev_u32 v8, 3072, v7
    v_mov_b32 v9, 0x80000000
    v_cmp_gt_u32 vcc, 3072, v7
    s_lshl_b32 s25, s4, 9
    s_nop 0
    v_cndmask_b32 v8, v8, v9, vcc
    v_lshlrev_b32 v9, 6, v6
    v_add_u32 v9, s25, v9
    s_mov_b32 s12, 4096
    s_mov_b32 s13, 65536
    s_mov_b32 s14, {65536 + 4096}
    s_mov_b32 s15, {65536 - 3072}
    """)
    run(srd_set(S_K, S_V, S_SK, S_WS, S_DBG))
    e("s_waitcnt lgkmcnt(0)")
    stamp(0)
    TR = UA
    for j in range(4):
        g.vm(f"buffer_load_dwordx4 v[{TR+4*j}:{TR+4*j+3}], v9, {srd(S_SK)}, 0 offen offset:{16*j}", "sk")
    SO = [["0", "s12"], ["s13", "s14"]]
    def kld(b, j):
        r = kreg(b, j)
        if j < 3: a, so, off = (("v8", "0", 1024 * j) if b == 0 else ("v7", "s15", 1024 * j))
        else: a, so, off = "v7", SO[b][(j - 3) >> 2], 1024 * ((j - 3) & 3)
        return VM(f"buffer_load_dwordx4 v[{r}:{r+3}], {a}, {srd(S_K)}, {so} offen offset:{off}{NT('kv')}", f"k{b}_{j}")
    def vld(b, j):
        r = vreg(j)
        return VM(f"buffer_load_dwordx4 v[{r}:{r+3}], v7, {srd(S_V)}, {SO[b][j >> 2]} offen offset:{1024*(j&3)}{NT('kv')}", f"v{b}_{j}")
    run([kld(0, j) for j in range(3)])
    for j in range(8): run([kld(0, j + 3), vld(0, j)])
    run(ids() + sloads() + srd_set(S_Q, S_GW, S_SSMK, S_W2, S_OUT))
    run(nonce_load("s4", "nonce"))
    e(f"""
    v_sub_u32 v8, 7, v5
    v_xor_b32 v8, v8, v6
    v_lshlrev_b32 v8, 4, v8
    v_lshl_add_u32 v8, v6, 10, v8
    s_lshl_b32 s24, s3, 14
    v_add_u32 v8, s24, v8
    v_add_u32 v15, s24, v{VL16}
    v_lshlrev_b32 v5, 12, v5
    v_lshl_add_u32 v{VCA}, v6, 4, v5
    s_lshl_b32 s24, s4, 18
    s_lshl_b32 s25, s6, 8
    s_sub_u32 s24, s24, s25
    s_add_u32 s11, s24, {WS_KVR + 4096 - 256}
    """)
    g.wvm("sk")
    for c_ in range(8):
        e(f"""
        v_lshlrev_b32 v{UTP+c_}, 16, v{TR+2*c_}
        v_and_b32 v{UTP+8+c_}, 0xffff0000, v{TR+2*c_}
        v_lshlrev_b32 v{UTP+16+c_}, 16, v{TR+2*c_+1}
        v_and_b32 v{UTP+24+c_}, 0xffff0000, v{TR+2*c_+1}
        """)
    def unpack(src, dst):
        it = []
        for m in range(4): it += I(f"v_lshlrev_b32 v{dst+2*m}, 16, v{src+m}\nv_and_b32 v{dst+2*m+1}, 0xffff0000, v{src+m}")
        return it
    def P(r): return f"v[{r}:{r+1}]"
    def kvstore(b, n, fl=""):
        r = kreg(b, 2 + n)
        return [f"v_xor_b32 v{VCB}, {16*n}, v{VCA}", f"s_add_u32 s24, s11, {32768*n}",
                f"buffer_store_dwordx4 v[{r}:{r+3}], v{VCB}, {srd(S_WS)}, s24 offen offset:{128*(1-b)}{fl}"]
    def stores(b):
        it = []
        for n in range(8):
            l = kvstore(b, n)
            it.append(grp(F("S", lambda n=n: g.wds(f"kr{b}_{n}")), I(l[0]), I(l[1]), VM(l[2], "kvst")))
        return it
    def block(b, side):
        for j in range(3):
            g.wvm(f"k{b}_{j}")
            run(unpack(kreg(b, j), UKW + 8 * (j & 3)))
        for j in range(8):
            g.wvm(f"k{b}_{j+3}", f"v{b}_{j}")
            run(unpack(kreg(b, j + 3), UKW + 8 * ((j + 3) & 3)))
            A = UA + 8 * (j & 1)
            UV = kreg(b, 0)
            run(unpack(vreg(j), UV))
            run(side.get(j, []))
            for m in range(4): e(f"v_pk_mul_f32 {P(A+2*m)}, {P(UKW+8*(j&3)+2*m)}, {P(UTP+24+2*m)}")
            for tp in (2, 1, 0):
                for m in range(4): e(f"v_pk_fma_f32 {P(A+2*m)}, {P(UKW+8*((j+3-tp)&3)+2*m)}, {P(UTP+8*tp+2*m)}, {P(A+2*m)}")
            for m in range(4): e(f"v_pk_mul_f32 {P(A+2*m)}, {P(A+2*m)}, {P(UV+2*m)}")
            if j & 1:
                for c_ in range(8): e(f"v_cvt_pk_bf16_f32 v{KO+4*c_+3-j//2}, v{UA+8+c_}, v{UA+c_}")
        for c_ in range(8):
            g.ds(f"ds_write_b128 v8, v[{KO+4*c_}:{KO+4*c_+3}] offset:{128*c_ + 8192*b}", f"kw{b}")
        for n in range(8):
            r = kreg(b, 2 + n)
            g.ds(f"ds_read_b128 v[{r}:{r+3}], v15 offset:{1024*n + 8192*b}", f"kr{b}_{n}")
    side = {j: [kld(1, j + 3), vld(1, j)] for j in range(8)}
    side[0] = [kld(1, j) for j in range(3)] + side[0]
    side[7] = side[7] + [x for x in touch()]
    block(0, side)
    stamp("kv0")
    st = stores(0)
    side = {j: [st[j]] for j in range(8)}
    side[1] = side[1] + nonce_check("s4", 88, "nonce") + hello_post()
    side[6] = side[6] + hello_load()
    block(1, side)
    stamp("kv1")
    run(stores(1))
    run(ssm_loads())
    run(w2_setup())
    g.wds_all()
    e("s_barrier")
    run(mode_check())
    vq = []
    for p in range(7): vq += w2_dma(p)
    run(vq[:4]); del vq[:4]
    redo = "\n".join(l for b in range(2) for n in range(8) for l in kvstore(b, n, " sc1"))
    run(flag_local(f"""
    s_lshl_b32 s92, s4, 7
    s_lshl_b32 s24, s6, 3
    s_add_u32 s92, s92, s24
    s_add_u32 s92, s92, {MB_KV}
    """, "kvst", redo))
    stamp("kvflag")
    e(f"""
    s_lshl_b32 s24, s8, 6
    s_lshl_b32 s25, s3, 4
    s_add_u32 s12, s24, s25           ; row0
    s_lshl_b32 s13, s12, 10
    """)
    gl = [VM(f"buffer_load_dwordx4 v[192:195], v{VL16}, {srd(S_GW)}, 0 offen", "gl")]
    for r in range(16):
        x = VM(f"buffer_load_dwordx4 v[{16+4*r}:{19+4*r}], v{VL16}, {srd(S_Q)}, s13 offen offset:{1024*(r&3)}", "gl")
        gl.append(grp(x, I("s_add_u32 s13, s13, 4096")) if r & 3 == 3 else x)
    vq = gl + vq
    packv(toep_valu() + toep_writes(), [vq])
    while g.vmq.count("gl") < 17: vq.pop(0)()
    vq = pollkv() + vq
    gi = [WV("gl")]
    GA_ = 200
    for m in range(4):
        for r in range(16):
            gi += I(f"v_dot2_f32_bf16 v{GA_+r}, v{16+4*r+m}, v{192+m}, {'0' if m == 0 else f'v{GA_+r}'}")
    for ctl in ("row_shr:1 row_mask:0xf bank_mask:0xf bound_ctrl:0", "row_shr:2 row_mask:0xf bank_mask:0xf bound_ctrl:0",
                "row_shr:4 row_mask:0xf bank_mask:0xf bound_ctrl:0", "row_shr:8 row_mask:0xf bank_mask:0xf bound_ctrl:0",
                "row_bcast:15 row_mask:0xa bank_mask:0xf", "row_bcast:31 row_mask:0xc bank_mask:0xf"):
        for r in range(16): gi += I(f"v_add_f32_dpp v{GA_+r}, v{GA_+r}, v{GA_+r} {ctl}")
    for r in range(0, 16, 2):
        gi += I(f"""
        v_readlane_b32 s24, v{GA_+r}, 63
        v_readlane_b32 s25, v{GA_+r+1}, 63
        s_nop 2
        v_writelane_b32 v6, s24, {r}
        v_writelane_b32 v6, s25, {r+1}
        """)
    gi += I(f"""
    v_cvt_pk_bf16_f32 v6, v6, v6
    v_lshlrev_b32 v6, 16, v6
    v_mul_f32 v6, 0xbfb8aa3b, v6    ; -log2e * x
    v_exp_f32 v6, v6
    s_lshl_b32 s12, s12, 3
    v_add_f32 v6, 1.0, v6
    v_rcp_f32 v6, v6
    s_add_u32 s12, s12, {WS_G}
    v_cvt_pk_bf16_f32 v6, v6, v6
    v_lshlrev_b32 v6, 16, v6
    v_mov_b32 v7, s88
    v_lshlrev_b32 v5, 3, v1
    """)
    gi.append(grp(I("s_mov_b64 exec, 0xffff"), VM(f"buffer_store_dwordx2 v[6:7], v5, {srd(S_WS)}, s12 offen sc1", "gst"), I("s_mov_b64 exec, -1")))
    for p in range(7, 14): vq += w2_stage(p)
    NG = ENV('NG', 120)
    packv(gi[:NG], [vq])
    while g.vmq.count("pollkv") < 1: vq.pop(0)()
    return vq, gi[NG:], []

def finish():
    if STAMPS:
        g.wvm_all()
        stamp(61)
use(G0)
prologue()
use(GA)
mid_and_g2(*regular())
finish()
g.lab("L_end")
e("s_endpgm")
use(GS)
mid_and_g2(*spare())
finish()
e("s_endpgm")

body = "\n".join(G0.L + GA.L + GS.L + ["L_codeend:"] + GA.tail + GS.tail)
if STAMPS:
    body += "\n; STAMPNAMES " + " ".join(GA.snames)
    body += "\n; STAMPSPARE " + " ".join(GS.snames)
out = HEADER + f"""; Override launch geometry by editing the next line (default: block=256,
; grid=ceil(out_elems/256), lds=0). Harness parses it; keep it on one line.
; @launch grid=(256,1,1) block=(256,1,1) lds={LDS_TOTAL}
.amdgcn_target "amdgcn-amd-amdhsa--gfx950"
.text
.globl {KNAME}
.p2align 8
.type {KNAME},@function
{KNAME}:
{body}
.section .rodata,"a"
.p2align 6
.amdhsa_kernel {KNAME}
  .amdhsa_next_free_vgpr 512
  .amdhsa_next_free_sgpr 102
  .amdhsa_accum_offset 256
  .amdhsa_group_segment_fixed_size 0
  .amdhsa_kernarg_size 104
  .amdhsa_user_sgpr_count 2
  .amdhsa_user_sgpr_kernarg_segment_ptr 1
  .amdhsa_system_sgpr_workgroup_id_x 1
.end_amdhsa_kernel
"""
dst = sys.argv[1] if len(sys.argv) > 1 else "gated_mix__ssm_conv_h3__dense_activation_silu__prompt.s"
open(dst, "w").write(out)
print("wrote", dst, len(out), "bytes", len(GA.L), len(GS.L), "lines; model t", GA.t, GS.t)
```
